```python
import torch

def _softmax(x, axis=-1):
    return torch.softmax(x, dim=axis)
def _gelu(x):
    return torch.nn.functional.gelu(x, approximate="tanh")
def _silu(x):
    return torch.nn.functional.silu(x)
def _sigmoid(x):
    return torch.sigmoid(x)
def _layernorm(x, axis=-1, eps=1e-5):
    m = x.mean(dim=axis, keepdim=True)
    v = x.var(dim=axis, keepdim=True, unbiased=False)
    return (x - m) / torch.sqrt(v + eps)
def _scatter_add(tgt, idx, src, axis=0):
    return tgt.clone().index_add_(axis, idx, src)
def _segment_sum(src, seg, n):
    out = torch.zeros((n,) + src.shape[1:], dtype=src.dtype)
    return out.index_add_(0, seg, src)
def _pad(x, pw):
    flat = tuple(v for pair in reversed(pw) for v in pair)
    return torch.nn.functional.pad(x, flat)

kernel_name = 'parallel_sum__sliding_local_dilated__swiglu_ffn__prompt'

def setup_inputs():

    _w = (lambda a: (lambda t: t.to(torch.bfloat16) if t.is_floating_point() else t)(torch.as_tensor(a)))
    def _A_setup():
        B, S, D = 1, 2048, 576
        return {
            "x": _w((lambda *s: torch.randn(*s, dtype=torch.bfloat16) * 0.05)(B, S, D)),
            "wqkv": _w((lambda *s: torch.randn(*s, dtype=torch.bfloat16) * 0.1)(D, 3 * D)),
            "wo": _w((lambda *s: torch.randn(*s, dtype=torch.bfloat16) * 0.05)(D, D)),
        }
    _A_in = _A_setup()

    def _B_setup():
        B, S, D, F = 1, 2048, 576, 4608
        return {
            "x": _w((lambda *s: torch.randn(*s, dtype=torch.bfloat16) * 0.05)(B, S, D)),
            "w_gate": _w((lambda *s: torch.randn(*s, dtype=torch.bfloat16) * 0.05)(D, F)),
            "w_up": _w((lambda *s: torch.randn(*s, dtype=torch.bfloat16) * 0.05)(D, F)),
            "w_down": _w((lambda *s: torch.randn(*s, dtype=torch.bfloat16) * 0.05)(F, D)),
        }
    _B_in = _B_setup()

    return {
        "A_x": _A_in["x"],
        "A_wqkv": _A_in["wqkv"],
        "A_wo": _A_in["wo"],
        "B_x": _B_in["x"],
        "B_w_gate": _B_in["w_gate"],
        "B_w_up": _B_in["w_up"],
        "B_w_down": _B_in["w_down"],
    }

def reference(A_x, A_wqkv, A_wo, B_x, B_w_gate, B_w_up, B_w_down):
    def _A_ref(x, wqkv, wo):
        B, S, D = x.shape
        H = 32; Dh = D // H
        W, dil = 8, 2
        qkv = (lambda x, *d: x.permute(*d))((x @ wqkv).reshape(B, S, 3, H, Dh), 2, 0, 3, 1, 4)
        q, k, v = qkv[0], qkv[1], qkv[2]
        scale = Dh ** -0.5
        pos = torch.arange(S)
        off = torch.arange(W) * dil
        idx = pos[:, None] - off[None, :]
        mask = idx >= 0
        idx_c = torch.where(mask, idx, 0).reshape(-1)
        kg = k[:, :, idx_c, :].reshape(B, H, S, W, Dh)
        vg = v[:, :, idx_c, :].reshape(B, H, S, W, Dh)
        logits = torch.einsum("bhsd,bhswd->bhsw", q, kg) * scale
        logits = torch.where(mask[None, None, :, :], logits, -1e9)
        attn = _softmax(logits, axis=-1)
        o = torch.einsum("bhsw,bhswd->bhsd", attn, vg)
        return (lambda x, *d: x.permute(*d))(o, 0, 2, 1, 3).reshape(B, S, D) @ wo

    def _B_ref(x, w_gate, w_up, w_down):
        g = _silu(x @ w_gate)
        u = x @ w_up
        return (g * u) @ w_down

    x = A_x
    xn = _layernorm(x, axis=-1)
    return x + _A_ref(xn, A_wqkv, A_wo) + _B_ref(xn, B_w_gate, B_w_up, B_w_down)
```

```python
import re

REG_RE = re.compile(r'^([vas])(\d+)$')
RNG_RE = re.compile(r'^([vas])\[(\d+):(\d+)\]$')

TRANS = ('v_exp_f32', 'v_rcp_f32', 'v_rsq_f32', 'v_log_f32', 'v_sqrt_f32', 'v_sin_f32', 'v_cos_f32')


def regs_of(tok):
    tok = tok.strip()
    neg = tok.lstrip('-')
    if neg.startswith('abs(') and neg.endswith(')'):
        neg = neg[4:-1]
    if neg.startswith('|') and neg.endswith('|'):
        neg = neg[1:-1]
    m = REG_RE.match(neg)
    if m:
        return [(m.group(1), int(m.group(2)))]
    m = RNG_RE.match(neg)
    if m:
        return [(m.group(1), i) for i in range(int(m.group(2)), int(m.group(3)) + 1)]
    if neg == 'vcc':
        return [('vcc', 0)]
    if neg == 'exec':
        return [('exec', 0)]
    if neg == 'm0':
        return [('m0', 0)]
    return []


class Ins:
    __slots__ = ('text', 'op', 'rd', 'wr', 'kind', 'tag', 'cost', 'ops')

    def __init__(self, text, tag=None):
        self.text = text
        self.tag = tag
        t = text.split(';')[0].strip()
        parts = t.split(None, 1)
        self.op = op = parts[0]
        rest = parts[1] if len(parts) > 1 else ''
        ops = []
        for piece in rest.split(','):
            piece = piece.strip()
            if not piece:
                continue
            ops.append(piece)
        mods = ''
        if ops:
            sp = ops[-1].split(None, 1)
            ops[-1] = sp[0]
            if len(sp) > 1:
                mods = sp[1]
        self.ops = ops
        mo = re.search(r'offset:(\d+)', mods)
        if mo:
            lim = 65535 if op.startswith('ds_') else 4095
            assert int(mo.group(1)) <= lim, 'offset out of range: ' + text
        R = [regs_of(o) for o in ops]
        rd, wr = [], []
        kind = 'other'
        cost = 4
        if op.startswith('v_mfma'):
            kind = 'mfma'; wr = R[0]; rd = R[1] + R[2] + R[3]; cost = 8
        elif op.startswith('ds_read') or op.startswith('ds_bpermute') or op.startswith('ds_swizzle'):
            kind = 'dsr'; wr = R[0]; rd = sum(R[1:], [])
        elif op.startswith('ds_write'):
            kind = 'dsw'; rd = sum(R, [])
            cost = 8 if ('b128' in op) else 4
        elif op.startswith('buffer_load') or op.startswith('global_load'):
            if ' lds' in (' ' + mods) or op.startswith('global_load_lds'):
                kind = 'dma'; rd = sum(R, []) + [('m0', 0)]; cost = 12
            else:
                kind = 'vld'; wr = R[0]; rd = sum(R[1:], []); cost = 8
        elif op.startswith('buffer_store') or op.startswith('global_store'):
            kind = 'vst'; rd = sum(R, []); cost = 8
        elif op.startswith('buffer_atomic') or op.startswith('global_atomic'):
            kind = 'vst'; rd = sum(R, []); cost = 8
        elif op in ('buffer_inv', 'buffer_wbl2'):
            kind = 'vst'
        elif op.startswith('v_cmp'):
            kind = 'valu'; wr = R[0]; rd = sum(R[1:], [])
        elif op.startswith('v_readfirstlane') or op.startswith('v_readlane'):
            kind = 'valu'; wr = R[0]; rd = sum(R[1:], [])
        elif op.startswith('v_permlane'):
            kind = 'valu'; wr = R[0] + R[1]; rd = R[0] + R[1]
        elif op.startswith('v_'):
            kind = 'valu'; wr = R[0]; rd = sum(R[1:], [])
            base = op.replace('_e32', '').replace('_e64', '')
            if base in ('v_fmac_f32', 'v_dot2c_f32_bf16', 'v_pk_fmac_f16'):
                rd = rd + R[0]
            if base in TRANS:
                cost = 8
            if base == 'v_cndmask_b32' and len(ops) == 3:
                rd = rd + [('vcc', 0)]
            if base in ('v_add_co_u32', 'v_sub_co_u32', 'v_addc_co_u32'):
                wr = R[0] + R[1]; rd = sum(R[2:], [])
        elif op == 's_waitcnt' or op == 's_barrier' or op == 's_nop' or op == 's_endpgm' or op.startswith('s_cbranch') \
                or op == 's_branch' or op == 's_sleep' or op == 's_setprio':
            kind = 'ctl'
        elif op.startswith('s_cmp'):
            kind = 'salu'; rd = sum(R, [])
        elif op.startswith('s_load') or op.startswith('s_memtime') or op.startswith('s_memrealtime'):
            kind = 'smem'; wr = R[0]; rd = sum(R[1:], [])
        elif op.startswith('s_'):
            kind = 'salu'; wr = R[0]; rd = sum(R[1:], [])
            if 'saveexec' in op:
                wr = wr + [('exec', 0)]; rd = rd + [('exec', 0)]
        else:
            raise ValueError('unknown op ' + text)
        self.rd, self.wr, self.kind, self.cost = rd, wr, kind, cost

    @property
    def is_trans(self):
        return self.op.replace('_e32', '').replace('_e64', '') in TRANS

    @property
    def is_dpp(self):
        return '_dpp' in self.op or 'row_' in self.text


class Emitter:
    def __init__(self):
        self.out = []
        self.ws = 0
        self.lastw = {}
        self.lastc = {}
        self.laststore = {}
        self.lgkm = []
        self.vm = []
        self.time = 0
        self.mfma_free = 0
        self.issue_t = {}
        self.nops = 0
        self.n = 0
        self.stats = {}
        self.m0_ws = -100

    def raw(self, text):
        self.out.append(text)

    def label(self, name):
        self.out.append(name + ':')

    def comment(self, c):
        self.out.append('; ' + c)

    def need_ws(self, ins):
        need = 0
        pos = self.ws

        def req(prev_pos, n):
            nonlocal need
            d = pos - prev_pos - 1
            if d < n:
                need = max(need, n - d)
        for r in ins.rd:
            lw = self.lastw.get(r)
            if lw is None:
                continue
            p, k, w = lw
            if r[0] in 'va':
                if k == 'valu':
                    if w.op.startswith('v_dot'):
                        if ins.op == w.op and len(ins.ops) > 3 and r in regs_of(ins.ops[3]) and r not in regs_of(ins.ops[1]) + regs_of(ins.ops[2]):
                            pass
                        else:
                            req(p, 3)
                    if ins.kind == 'mfma':
                        req(p, 2)
                    if ins.op.startswith('v_permlane') or (ins.kind == 'valu' and ins.is_dpp):
                        req(p, 2)
                    if ins.op.startswith('v_readfirstlane') or ins.op.startswith('v_readlane'):
                        req(p, 1)
                    if w.is_trans and ins.kind in ('valu', 'mfma', 'dsw', 'vst', 'dsr', 'vld', 'dma') and not ins.is_trans:
                        req(p, 1)
                    if w.is_trans and ins.is_trans:
                        req(p, 1)
                elif k == 'mfma':
                    if ins.kind == 'mfma':
                        c = regs_of(ins.ops[3])
                        if r in c and r not in regs_of(ins.ops[1]) + regs_of(ins.ops[2]):
                            if ins.ops[3] == w.ops[0]:
                                pass
                            else:
                                req(p, 6)
                        else:
                            req(p, 8)
                    else:
                        req(p, 8)
            elif r[0] == 's' or r[0] == 'vcc':
                if k == 'valu':
                    if ins.kind == 'valu':
                        req(p, 2)
                        if ins.op.startswith('v_readlane') or ins.op.startswith('v_writelane'):
                            req(p, 4)
                    elif ins.kind in ('vld', 'vst', 'dma'):
                        req(p, 5)
                    else:
                        req(p, 4)
            elif r[0] == 'm0':
                if ins.kind == 'dma':
                    req(p, 1)
            elif r[0] == 'exec':
                pass
        for r in ins.wr:
            lw = self.lastw.get(r)
            if lw is not None and r[0] in 'va':
                p, k, w = lw
                if k == 'valu' and w.op.startswith('v_dot') and ins.op != w.op:
                    req(p, 3)
                if k == 'mfma':
                    if ins.kind == 'mfma' and ins.ops[0] == w.ops[0] and ins.ops[3] == w.ops[0]:
                        pass
                    elif ins.kind == 'mfma':
                        req(p, 8)
                    else:
                        req(p, 8)
            if ins.kind == 'valu':
                c = self.lastc.get(r)
                if c is not None:
                    req(c, 3)
                s = self.laststore.get(r)
                if s is not None:
                    req(s, 2)
            elif ins.kind in ('dsr', 'vld'):
                s = self.laststore.get(r)
                if s is not None:
                    req(s, 1)
        return need

    def need_waits(self, ins):
        touched = set(ins.rd) | set(ins.wr)
        l = None
        for i in range(len(self.lgkm) - 1, -1, -1):
            if self.lgkm[i] & touched:
                l = len(self.lgkm) - 1 - i
                break
        v = None
        for i in range(len(self.vm) - 1, -1, -1):
            if self.vm[i][0] & touched:
                v = len(self.vm) - 1 - i
                break
        return l, v

    def _wait(self, l=None, v=None):
        parts = []
        if v is not None:
            v = min(v, 63)
            parts.append(f'vmcnt({v})')
            if v < len(self.vm):
                self.vm = self.vm[len(self.vm) - v:] if v > 0 else []
        if l is not None:
            l = min(l, 15)
            parts.append(f'lgkmcnt({l})')
            if l < len(self.lgkm):
                self.lgkm = self.lgkm[len(self.lgkm) - l:] if l > 0 else []
        if parts:
            self.out.append('s_waitcnt ' + ' '.join(parts))
            self.ws += 1
            self.time += 4

    def wait_lgkm(self, n=0):
        if len(self.lgkm) > n:
            self._wait(l=n)

    def wait_vm(self, n=0):
        if len(self.vm) > n:
            self._wait(v=n)

    def wait_vm_tag(self, tag):
        for i in range(len(self.vm) - 1, -1, -1):
            if self.vm[i][1] == tag:
                self._wait(v=len(self.vm) - 1 - i)
                return

    def barrier(self):
        self.out.append('s_barrier')
        self.ws += 1
        self.time += 8

    def ready(self, text_or_ins, lds_lat=140):
        ins = text_or_ins if isinstance(text_or_ins, Ins) else Ins(text_or_ins)
        if self.need_ws(ins) > 0:
            return False
        l, v = self.need_waits(ins)
        if l is not None or v is not None:
            for r in set(ins.rd) | set(ins.wr):
                t = self.issue_t.get(r)
                if t is not None:
                    lat, t0 = t
                    if self.time - t0 < lat:
                        return False
        return True

    def emit(self, text, tag=None):
        ins = text if isinstance(text, Ins) else Ins(text, tag)
        if tag is not None:
            ins.tag = tag
        l, v = self.need_waits(ins)
        if l is not None or v is not None:
            self._wait(l, v)
        n = self.need_ws(ins)
        if n > 0:
            self.nops += n
            while n > 0:
                k = min(n, 16)
                self.out.append(f's_nop {k - 1}')
                self.ws += k
                self.time += 4 * k
                n -= k
        self.out.append(ins.text)
        self.n += 1
        self.stats[ins.kind] = self.stats.get(ins.kind, 0) + 1
        pos = self.ws
        if ins.op == 's_nop':
            self.ws += int(ins.ops[0]) + 1
        else:
            self.ws += 1
        if ins.kind == 'mfma':
            start = max(self.time, self.mfma_free)
            self.time = start + 8
            self.mfma_free = start + 16
        else:
            self.time += ins.cost
        for r in ins.wr:
            self.lastw[r] = (pos, ins.kind, ins)
            self.lastc.pop(r, None)
        if ins.kind == 'mfma':
            for r in regs_of(ins.ops[3]):
                self.lastc[r] = pos
        if ins.kind == 'vst' and ('x4' in ins.op or 'x3' in ins.op):
            for r in regs_of(ins.ops[0]):
                self.laststore[r] = pos
        if ins.kind in ('dsr', 'dsw'):
            self.lgkm.append(set(ins.wr))
            for r in ins.wr:
                self.issue_t[r] = (140, self.time)
        elif ins.kind in ('vld', 'vst', 'dma'):
            self.vm.append((set(ins.wr), ins.tag))
            for r in ins.wr:
                self.issue_t[r] = (3000, self.time)
        elif ins.kind == 'smem':
            pass
        return ins

    def emits(self, lines, tag=None):
        if isinstance(lines, str):
            lines = [x for x in lines.split('\n') if x.strip()]
        for x in lines:
            self.emit(x.strip(), tag)

    def text(self):
        return '\n'.join(self.out) + '\n'


class Side:
    def __init__(self, name=''):
        self.q = []
        self.name = name

    def add(self, *lines, tag=None):
        for l in lines:
            for x in l.split('\n'):
                x = x.strip()
                if x:
                    self.q.append(Ins(x, tag))

    def group(self, *lines, tag=None):
        g = []
        for l in lines:
            for x in l.split('\n'):
                x = x.strip()
                if x:
                    g.append(Ins(x, tag))
        self.q.append(g)

    def __len__(self):
        return len(self.q)


def fill_gap(E, sides, budget, quota=None):
    used = 0
    progress = True
    while progress:
        progress = False
        for s in sides:
            if not s.q:
                continue
            ins = s.q[0]
            if isinstance(ins, list):
                if used > 0 and used + 4 * len(ins) > budget:
                    continue
                if not E.ready(ins[0]):
                    continue
                s.q.pop(0)
                for x in ins:
                    E.emit(x)
                used += 4 * len(ins)
                progress = used < budget
                break
            c = 16 if ins.kind == 'mfma' else ins.cost
            if ins.kind != 'mfma' and used + c > budget:
                continue
            if ins.kind == 'mfma' and used > 0:
                continue
            if not E.ready(ins):
                continue
            s.q.pop(0)
            E.emit(ins)
            if ins.kind == 'mfma':
                used = 0
            else:
                used += c
            progress = True
            break
    return used


def drain(E, sides):
    for s in sides:
        while s.q:
            x = s.q.pop(0)
            if isinstance(x, list):
                for y in x:
                    E.emit(y)
            else:
                E.emit(x)
```

```python
import sys
from asmlib import *

SLOT = 24576
NSLOT = 5
NONRING = SLOT * NSLOT
HALO0 = NONRING
HALO1 = NONRING + 18432
MISC = NONRING + 36864
RSTD = 0
C2A = 576
ZERO = 1280
VXB = 1536
XA = 2 * SLOT
EXO = NONRING
EXP0 = NONRING + 16384
LDS_BYTES = 163840
LOG2E = 1.4426950408889634
SCALE = 18 ** -0.5

import struct
def f2u(x):
    return struct.unpack('<I', struct.pack('<f', x))[0]

SX, SQ, SO, SF, SD, SW = 8, 12, 16, 20, 24, 28
def srd(n): return f's[{n}:{n+3}]'
sW, sTG, sFH, sTB, sFC, sT0 = 50, 51, 52, 53, 54, 55
sSEL_LO, sSEL_HI, sONES = 56, 57, 58
sSOFF = 72
sLW = 73
sFB = 74
sFHB = 75
sK2 = 60
sPB = 76

vLANE, vT16, vG = 1, 2, 3
XV = 16
S0, S1 = 48, 112
AF = 176
HR = 192
vDMA = 224
vTR = 230
vC1 = 236
vC2 = 240
vTMP = 244
vX0 = 252


def breg(s, tt):
    idx = (s * 4 + tt) * 4
    if idx < 256:
        return f'a[{idx}:{idx+3}]'
    b = XV + idx - 256
    return f'v[{b}:{b+3}]'


def vr(b, n=4):
    return f'v[{b}:{b+n-1}]'


def lds_base_sel(off):
    b = off // 49152
    return b, off - b * 49152


class Gen:
    def __init__(self, dbg=None):
        self.E = Emitter()
        self.dbg = dbg or {}

    def xlane_sum(self, a, b, op='v_add_f32'):
        return [f'v_mov_b32 v{b}, v{a}', f'v_permlane16_swap_b32 v{a}, v{b}', f'{op} v{a}, v{a}, v{b}',
                f'v_mov_b32 v{b}, v{a}', f'v_permlane32_swap_b32 v{a}, v{b}', f'{op} v{a}, v{a}, v{b}']

    def dump_regs(self, regs, slot, kind='v'):
        E = self.E
        E.wait_lgkm(0); E.wait_vm(0)
        E.emits(f'''s_lshl_b32 s90, s2, 2
        s_add_u32 s90, s90, s{sW}
        s_lshl_b32 s90, s90, 17
        s_add_u32 s90, s90, 0x4000000
        v_lshlrev_b32 v{vX0+3}, 2, v{vLANE}''')
        for i, r in enumerate(regs):
            off = (slot + i) * 256
            if kind == 'a' or (isinstance(r, str) and r.startswith('a')):
                rr = r if isinstance(r, str) else f'a{r}'
            else:
                rr = f'v{r}'
            E.emit(f's_add_u32 s91, s90, {off}')
            E.emit(f'buffer_store_dword {rr}, v{vX0+3}, {srd(SW)}, s91 offen')
        E.wait_vm(0)

    def prologue(self):
        E = self.E
        E.emits(f'''s_cmp_ge_u32 s2, 256
        s_cbranch_scc1 L_main_end
        s_load_dwordx4 s[36:39], s[0:1], 0
        s_load_dwordx2 s[40:41], s[0:1], 16
        s_load_dwordx4 s[44:47], s[0:1], 32
        s_load_dwordx2 s[42:43], s[0:1], 48
        s_load_dwordx2 s[48:49], s[0:1], 72
        v_lshrrev_b32 v4, 6, v0
        v_and_b32 v{vLANE}, 63, v0
        v_and_b32 v{vT16}, 15, v0
        v_readfirstlane_b32 s{sW}, v4
        v_bfe_u32 v{vG}, v0, 4, 2
        s_and_b32 s{sFC}, s2, 7
        s_lshl_b32 s{sFC}, s{sFC}, 1
        s_lshr_b32 s3, s2, 3
        s_and_b32 s3, s3, 1
        s_add_u32 s{sFC}, s{sFC}, s3
        s_lshr_b32 s{sTB}, s2, 4
        s_lshl_b32 s{sT0}, s{sTB}, 7
        s_lshr_b32 s{sTG}, s{sW}, 1
        s_and_b32 s{sFH}, s{sW}, 1
        s_mov_b32 s{sSEL_LO}, 0x00003f80
        s_mov_b32 s{sSEL_HI}, 0x3f800000
        s_mov_b32 s{sONES}, 0x3f803f80''')
        E.raw('s_waitcnt lgkmcnt(0)')
        E.ws += 1
        for (r, p, sz) in ((SX, 36, 2359296), (SQ, 38, 1990656), (SO, 40, 663552), (SD, 42, 5308416), (SW, 48, 0x10000000)):
            E.emits(f'''s_mov_b32 s{r}, s{p}
            s_mov_b32 s{r+1}, s{p+1}
            s_mov_b32 s{r+2}, {sz}
            s_mov_b32 s{r+3}, 0x20000''')
        E.emits(f'''s_cmp_ge_u32 s{sW}, 2
        s_cselect_b32 s{SF}, s46, s44
        s_cselect_b32 s{SF+1}, s47, s45
        s_mov_b32 s{SF+2}, 5308416
        s_mov_b32 s{SF+3}, 0x20000''')
        E.emits(f'''s_lshl_b32 s3, s{sW}, 5
        s_add_u32 s3, s3, s{sT0}
        v_add_u32 v4, s3, v{vT16}
        s_movk_i32 s59, 1152
        v_mul_lo_u32 v4, v4, s59
        v_lshl_add_u32 v4, v{vG}, 4, v4
        s_movk_i32 s61, 18432''')
        RA, RB, RH = 48, 120, 192
        for s in range(18):
            E.emit(f'buffer_load_dwordx4 {vr(RA + 4*s)}, v4, {srd(SX)}, 0 offen offset:{s*64}')
        E.emits(f'''v_and_b32 v5, 3, v{vLANE}
        v_lshrrev_b32 v6, 2, v{vLANE}
        s_lshl_b32 s3, s{sW}, 2
        s_add_u32 s3, s3, s{sT0}
        s_sub_u32 s3, s3, 16
        v_add_u32 v7, s3, v5
        v_mul_lo_u32 v7, v7, s59
        v_mul_u32_u24 v8, 72, v6
        v_add_u32 v7, v7, v8''')
        for i in range(4):
            E.emit(f'buffer_load_dwordx4 {vr(RH + 4*i)}, v7, {srd(SX)}, 0 offen offset:{i*16}')
        E.emit(f'buffer_load_dwordx2 {vr(RH + 16, 2)}, v7, {srd(SX)}, 0 offen offset:64')
        for s in range(18):
            E.emit(f'buffer_load_dwordx4 {vr(RB + 4*s)}, v4, {srd(SX)}, s61 offen offset:{s*64}')
        for n in range(5):
            d = vDMA + n
            E.emits(f'''s_lshl_b32 s3, s{sW}, 6
            s_add_u32 s3, s3, {256*n}
            v_add_u32 v8, s3, v{vLANE}
            v_mul_u32_u24 v9, 3641, v8
            v_lshrrev_b32 v9, 16, v9
            v_mul_u32_u24 v10, 18, v9
            v_sub_u32 v10, v8, v10
            v_cmp_le_u32 vcc, 9, v10
            v_cndmask_b32 v11, 0, 9, vcc
            v_sub_u32 v10, v10, v11
            v_lshlrev_b32 v11, 2, v11
            v_and_b32 v12, 4, v9
            v_and_b32 v13, 8, v9
            v_and_b32 v9, 0xfffffff3, v9
            v_lshl_or_b32 v9, v12, 1, v9
            v_lshrrev_b32 v13, 1, v13
            v_or_b32 v9, v9, v13
            s_movk_i32 s3, 3456
            v_mul_lo_u32 v9, v9, s3
            v_add_u32 v9, v9, v11
            v_lshrrev_b32 v12, 1, v10
            v_mul_u32_u24 v12, 1152, v12
            v_and_b32 v13, 1, v10
            v_lshl_add_u32 v12, v13, 4, v12
            v_subrev_u32 v13, 6, v10
            v_mul_u32_u24 v13, 1152, v13
            v_add_u32 v13, 32, v13
            v_cmp_gt_u32 vcc, 6, v10
            v_cndmask_b32 v12, v13, v12, vcc
            v_add_u32 v9, v9, v12
            s_mul_i32 s3, s{sFC}, 72
            v_add_u32 v{d}, s3, v9''')
        E.emit(f's_lshl_b32 s{sLW}, s{sW}, 10')
        self.dma_qkv(0)
        self.dma_qkv(1)
        E.emits(f'''v_mov_b32 v8, 0
        v_lshlrev_b32 v9, 2, v{vLANE}
        v_add_u32 v9, {MISC}, v9
        ds_write_b32 v9, v8 offset:{ZERO}''')
        E.emits(f'''v_mul_u32_u24 v8, 36, v6
        s_lshl_b32 s3, s{sW}, 2
        v_add_u32 v9, s3, v5
        v_lshlrev_b32 v9, 4, v9
        v_add_u32 v9, {HALO0}, v9''')
        for i in range(9):
            E.emits(f'''v_add_u32 v10, {4*i}, v8
            v_lshrrev_b32 v11, 3, v10
            v_and_b32 v10, 4, v10
            v_lshl_add_u32 v11, v11, 8, v9
            v_lshl_add_u32 v{212+i}, v10, 1, v11''')
        E.emits(f'''v_add_u32 v10, s3, v5
        v_lshlrev_b32 v221, 2, v10
        v_add_u32 v221, {MISC}, v221''')
        sA, sB, tA = 8, 9, 10
        E.emits(f'v_mov_b32 v{sA}, 0\nv_mov_b32 v{sB}, 0')
        for i in range(18):
            E.emit(f'v_dot2c_f32_bf16 v{sA}, v{RH+i}, s{sONES}' if False else f'v_dot2_f32_bf16 v{sA}, v{RH+i}, s{sONES}, v{sA}')
            E.emit(f'v_dot2_f32_bf16 v{sB}, v{RH+i}, v{RH+i}, v{sB}')
        for r in (sA, sB):
            E.emits(f'''s_nop 2
            v_add_f32_dpp v{r}, v{r}, v{r} row_ror:4 row_mask:0xf bank_mask:0xf
            v_add_f32_dpp v{r}, v{r}, v{r} row_ror:8 row_mask:0xf bank_mask:0xf''')
            E.emits(self.xlane_sum(r, tA))
        self.ln_finish(sA, sB, 11, 12, 13)
        E.emits(f'''ds_write_b32 v221, v13 offset:{RSTD}
        ds_write_b32 v221, v12 offset:{C2A}''')
        self.ln_norm(RH, 18, 11)
        for i in range(9):
            E.emit(f'ds_write_b64 v{212+i}, {vr(RH+2*i, 2)}')
        E.emits(f'''s_mul_i32 s3, s{sW}, 18432
        s_add_u32 s3, s3, {XA}
        v_lshlrev_b32 v14, 4, v{vLANE}
        v_add_u32 v15, s3, v14
        s_cmp_eq_u32 s{sW}, 1
        s_cselect_b32 s3, {HALO1}, s3
        v_add_u32 v5, s3, v14''')
        E.emits(f'''s_lshl_b32 s3, s{sW}, 5
        s_add_u32 s3, s3, 16
        v_add_u32 v6, s3, v{vT16}
        v_lshlrev_b32 v6, 2, v6
        v_add_u32 v6, {MISC}, v6''')
        self.ln_tile(RA, 15, 6, 0)
        E.wait_lgkm(0)
        E.barrier()
        E.emits(f'''s_mul_i32 s3, s{sTG}, 36864
        s_add_u32 s3, s3, {XA}
        v_add_u32 v7, s3, v14''')
        rd = Side()
        for s in range(18):
            rd.add(f'ds_read_b128 {breg(s,0)}, v7 offset:{s*1024}')
            rd.add(f'ds_read_b128 {breg(s,2)}, v7 offset:{18432 + s*1024}')
        self.ln_tile(RB, None, 6, 64, side=rd)
        drain(E, [rd])
        E.wait_lgkm(0)
        E.barrier()
        for s in range(18):
            E.emit(f'ds_write_b128 v5, {vr(RB+4*s)} offset:{s*1024}')
        E.wait_lgkm(0)
        E.barrier()
        E.emits(f'''s_mov_b32 s3, {HALO1}
        s_cmp_eq_u32 s{sTG}, 0
        s_cselect_b32 s3, s3, {XA + 3*18432}
        v_add_u32 v8, s3, v14''')
        for s in range(18):
            E.emit(f'ds_read_b128 {breg(s,1)}, v7 offset:{s*1024}')
            E.emit(f'ds_read_b128 {breg(s,3)}, v8 offset:{s*1024}')
        E.emits(f'''s_lshl_b32 s3, s{sTG}, 6
        s_add_u32 s3, s3, 16
        v_add_u32 v9, s3, v{vT16}
        v_lshlrev_b32 v9, 2, v9
        v_add_u32 v9, {MISC}, v9''')
        for tt in range(4):
            E.emit(f'ds_read_b32 v{vC1+tt}, v9 offset:{RSTD + tt*64}')
            E.emit(f'ds_read_b32 v{vC2+tt}, v9 offset:{C2A + tt*64}')
        for tt in range(4):
            E.emit(f'v_mul_f32 v{vC1+tt}, {hex(f2u(-LOG2E))}, v{vC1+tt}')
        E.wait_lgkm(0)
        E.barrier()

    def ln_finish(self, s1, s2, negmean, c2, rstd):
        E = self.E
        E.emits(f'''v_mul_f32 v{negmean}, {hex(f2u(-1.0/576))}, v{s1}
        v_mul_f32 v{c2}, {hex(f2u(1.0/576))}, v{s2}
        v_fma_f32 v{c2}, -v{negmean}, v{negmean}, v{c2}
        v_max_f32 v{c2}, 0, v{c2}
        v_add_f32 v{c2}, {hex(f2u(1e-5))}, v{c2}
        v_rsq_f32 v{rstd}, v{c2}''')

    def ln_norm(self, R, n, negmean, wr=None, side=None):
        E = self.E
        T = vTMP
        pend = []
        for i in range(n + 2):
            if i < n:
                t = T + (i % 4) * 2
                E.emit(f'v_dot2_f32_bf16 v{t}, v{R+i}, s{sSEL_LO}, v{negmean}')
                E.emit(f'v_dot2_f32_bf16 v{t+1}, v{R+i}, s{sSEL_HI}, v{negmean}')
            if i >= 2:
                k = i - 2
                t = T + (k % 4) * 2
                E.emit(f'v_cvt_pk_bf16_f32 v{R+k}, v{t}, v{t+1}')
                if wr is not None and k % 4 == 3:
                    E.emit(f'ds_write_b128 v{wr}, {vr(R + k - 3)} offset:{(k//4)*1024}')
            if side is not None and side.q:
                E.emit(side.q.pop(0))

    def ln_tile(self, R, wr, statidx, statoff, side=None):
        E = self.E
        a1, a2, b1, b2, t = 8, 9, 10, 11, 12
        for r in (a1, a2, b1, b2):
            E.emit(f'v_mov_b32 v{r}, 0')
        for i in range(0, 72, 2):
            E.emit(f'v_dot2_f32_bf16 v{a1}, v{R+i}, s{sONES}, v{a1}')
            E.emit(f'v_dot2_f32_bf16 v{b1}, v{R+i}, v{R+i}, v{b1}')
            E.emit(f'v_dot2_f32_bf16 v{a2}, v{R+i+1}, s{sONES}, v{a2}')
            E.emit(f'v_dot2_f32_bf16 v{b2}, v{R+i+1}, v{R+i+1}, v{b2}')
            if side is not None and side.q and i % 4 == 0:
                E.emit(side.q.pop(0))
        E.emits(f'''s_nop 2
        v_add_f32 v{a1}, v{a1}, v{a2}
        v_add_f32 v{b1}, v{b1}, v{b2}''')
        E.emits(self.xlane_sum(a1, t))
        E.emits(self.xlane_sum(b1, t))
        self.ln_finish(a1, b1, 11, 12, 13)
        E.emits(f'''ds_write_b32 v{statidx}, v13 offset:{RSTD + statoff}
        ds_write_b32 v{statidx}, v12 offset:{C2A + statoff}''')
        self.ln_norm(R, 72, 11, wr=wr, side=side)

    def dma_qkv(self, j, side=None):
        lines = [f's_mov_b32 s{sSOFF}, {j*64*3456}']
        for n in range(5):
            lines.append(f's_add_u32 m0, s{sLW}, {(j % NSLOT)*SLOT + n*4096}')
            lines.append(f'buffer_load_dwordx4 v{vDMA+n}, {srd(SQ)}, s{sSOFF} offen lds')
        return self._out(lines, side, ('st', j))

    def _out(self, lines, side, tag):
        if side is None:
            for l in lines:
                if isinstance(l, (list, tuple)):
                    for x in l:
                        self.E.emit(x, tag=tag)
                else:
                    self.E.emit(l, tag=tag)
        else:
            for l in lines:
                if isinstance(l, (list, tuple)):
                    side.group(*l, tag=tag)
                else:
                    side.add(l, tag=tag)

    def ffn_dma_setup_full(self, side=None):
        L = []
        T = 8
        L += [f's_lshr_b32 s94, s{sW}, 1', f's_mul_i32 s{sLW}, s94, 12288', f's_and_b32 s94, s{sW}, 1',
              f's_mul_i32 s95, s94, 6144', f's_add_u32 s{sLW}, s{sLW}, s95',
              f's_mul_i32 s95, s94, {48*9216}',
              f'v_lshrrev_b32 v{T}, 3, v{vLANE}',
              f'v_and_b32 v{T+1}, 7, v{vLANE}',
              f'v_and_b32 v{T+2}, 2, v{T}',
              f'v_xor_b32 v{T+1}, v{T+1}, v{T+2}',
              f's_movk_i32 s94, 9216',
              f'v_mul_lo_u32 v{T}, v{T}, s94',
              f'v_add_u32 v{T}, s95, v{T}',
              f'v_xor_b32 v{T+2}, 4, v{T+1}',
              f'v_lshl_add_u32 v{T+1}, v{T+1}, 4, v{T}',
              f'v_lshl_add_u32 v{T+2}, v{T+2}, 4, v{T}']
        for n in range(6):
            L.append(f'v_add_u32 v{vDMA+n}, {n*8*9216 - (n%4)*1024}, v{T+1+(n&1)}')
        L += [f's_mul_i32 s{sFB}, s{sFC}, 576', f's_and_b32 s94, s{sFC}, 1',
              f's_lshl_b32 s95, s94, 6', f's_add_u32 s{sFHB}, s{sFB}, 512',
              [f's_cmp_eq_u32 s94, 1', f's_cselect_b32 s{sFHB}, s{sFB}, s{sFHB}'],
              f's_add_u32 s{sFB}, s{sFB}, s95']
        self._out(L, side, None)

    def ffn_dma_setup_half(self, side=None):
        T = 8
        L = [f's_and_b32 s94, s{sW}, 1', f's_mul_i32 s95, s94, {96*9216}',
             f'v_lshrrev_b32 v{T}, 2, v{vLANE}', f'v_and_b32 v{T+1}, 3, v{vLANE}',
             f'v_lshrrev_b32 v{T+2}, 3, v{T}', f'v_lshlrev_b32 v{T+2}, 1, v{T+2}',
             f'v_xor_b32 v{T+1}, v{T+1}, v{T+2}',
             f's_movk_i32 s94, 9216', f'v_mul_lo_u32 v{T}, v{T}, s94', f'v_add_u32 v{T}, s95, v{T}',
             f'v_lshl_add_u32 v{T}, v{T+1}, 4, v{T}']
        for n in range(6):
            L.append(f'v_add_u32 v{vDMA+n}, {n*16*9216 - (n%4)*1024}, v{T}')
        self._out(L, side, None)

    def dma_ffn(self, st, p, j, side=None):
        if p < 4:
            lines = [f's_add_u32 s{sSOFF}, s{sFB}, {j*96*9216 + p*128}']
        else:
            lines = [f's_add_u32 s{sSOFF}, s{sFHB}, {j*192*9216}']
        for n in range(6):
            if n % 4 == 0:
                lines.append(f's_add_u32 m0, s{sLW}, {(st % NSLOT)*SLOT + n*1024}')
            lines.append(f'buffer_load_dwordx4 v{vDMA+n}, {srd(SF)}, s{sSOFF} offen offset:{(n%4)*1024} lds')
        self._out(lines, side, ('st', st))

    def p2_setup(self, side=None):
        T = 8
        L = [f's_lshl_b32 s{sLW}, s{sW}, 10',
             f'v_lshrrev_b32 v{T}, 3, v{vLANE}', f'v_and_b32 v{T+1}, 7, v{vLANE}',
             f'v_and_b32 v{T+2}, 6, v{T}', f'v_xor_b32 v{T+1}, v{T+1}, v{T+2}',
             f'v_mul_u32_u24 v{T+2}, 1152, v{T}',
             f'v_lshl_add_u32 v{vDMA}, v{T+1}, 4, v{T+2}',
             [f's_cmp_lt_u32 s{sW}, 2', f's_cselect_b32 s94, 8, 2'], [f's_cmp_eq_u32 s{sW}, 3', f's_cselect_b32 s94, 0, s94'],
             f'v_mov_b32 v{T+2}, 0x40000000',
             [f'v_cmp_gt_u32 vcc, s94, v{T}', 's_nop 1', f'v_cndmask_b32 v{vDMA+1}, v{T+2}, v{vDMA}, vcc'],
             ]
        L += [f's_lshr_b32 s94, s{sW}, 1', f's_and_b32 s95, s{sW}, 1', f's_lshl_b32 s95, s95, 3',
              f's_lshl_b32 s96, s94, 5', f's_add_u32 s96, s96, s95', f's_lshr_b32 s97, s{sFB}, 1', f's_add_u32 s96, s96, s97',
              f's_mul_i32 s96, s96, 1152']
        for p in range(4):
            for i in range(2):
                L.append(f's_add_u32 s{sK2 + 2*p + i}, s96, {(64*p + 16*i)*1152}')
        L += [f's_lshl_b32 s96, s94, 4', f's_add_u32 s96, s96, s95', f's_lshr_b32 s97, s{sFHB}, 1', f's_add_u32 s97, s96, s97',
              f's_mul_i32 s{sK2+8}, s97, 1152',
              f's_mul_i32 s97, s{sFC}, 36', f's_add_u32 s96, s96, s97',
              f's_mul_i32 s{sK2+9}, s96, 1152', f's_add_u32 s{sK2+10}, s{sK2+9}, {18*1152}']
        self._out(L, side, None)

    def dma_p2(self, st, panel, half, side=None):
        ks = range(0, 6) if half == 0 else range(6, 11)
        lines = []
        for n, k in enumerate(ks):
            lines.append(f's_add_u32 m0, s{sLW}, {(st % NSLOT)*SLOT + n*4096}')
            if k < 9:
                lines.append(f'buffer_load_dwordx4 v{vDMA}, {srd(SD)}, s{sK2+k} offen lds')
            else:
                lines.append(f'buffer_load_dwordx4 v{vDMA+1}, {srd(SO)}, s{sK2+k} offen lds')
        if half == 1:
            lines += [f'v_add_u32 v{vDMA}, 128, v{vDMA}', f'v_add_u32 v{vDMA+1}, 128, v{vDMA+1}']
        self._out(lines, side, ('st', st))

    def tr_setup(self, kind, base, side=None):
        T = vX0
        L = [f'v_bfe_u32 v{T}, v{vLANE}, 2, 2',
             f'v_and_b32 v{T+1}, 3, v{vLANE}']
        if kind == 'qkv':
            L += [f'v_lshrrev_b32 v{T+2}, 1, v{vG}', f'v_lshlrev_b32 v{T+2}, 4, v{T+2}',
                  f'v_and_b32 v{T+3}, 1, v{vG}', f'v_lshl_add_u32 v{T+2}, v{T+3}, 2, v{T+2}',
                  f'v_add_u32 v{T+2}, v{T+2}, v{T}',
                  f'v_mul_u32_u24 v{T+2}, 288, v{T+2}',
                  f's_mul_i32 s3, s{sFH}, 144', f'v_add_u32 v{T+2}, s3, v{T+2}',
                  f'v_lshl_add_u32 v{base}, v{T+1}, 3, v{T+2}',
                  f'v_min_u32 v{T+1}, 2, v{T+1}',
                  f'v_lshl_add_u32 v{base+3}, v{T+1}, 4, v{T+2}',
                  f'v_add_u32 v{base+3}, 96, v{base+3}']
            for o in (0, 3):
                L += [f'v_add_u32 v{base+o+1}, 49152, v{base+o}', f'v_add_u32 v{base+o+2}, 98304, v{base+o}']
        elif kind in ('full', 'p2'):
            sh = 3 if kind == 'full' else 2
            L += [f'v_lshlrev_b32 v{T+2}, {sh}, v{vG}', f'v_add_u32 v{T+2}, v{T+2}, v{T}', f'v_lshlrev_b32 v{T+2}, 7, v{T+2}',
                  f'v_and_b32 v{T+3}, 1, v{T+1}', f'v_lshl_add_u32 v{T+2}, v{T+3}, 3, v{T+2}',
                  f'v_lshrrev_b32 v{T+1}, 1, v{T+1}', f'v_lshl_add_u32 v{T+2}, v{T+1}, 4, v{T+2}',
                  f'v_lshrrev_b32 v{T}, 1, v{T}', f'v_and_b32 v{T+3}, 1, v{vG}', f'v_lshl_add_u32 v{T}, v{T+3}, 1, v{T}',
                  f's_lshl_b32 s3, s{sFH}, 1']
            for i in range(2):
                L += [f'v_xor_b32 v{T+1}, s3, v{T}', f'v_lshl_add_u32 v{base+3*i}, v{T+1}, 5, v{T+2}',
                      f'v_add_u32 v{base+3*i+1}, 49152, v{base+3*i}', f'v_add_u32 v{base+3*i+2}, 98304, v{base+3*i}']
                if i == 0:
                    L.append('s_add_u32 s3, s3, 1')
        elif kind == 'half':
            L += [f'v_lshlrev_b32 v{T+2}, 3, v{vG}', f'v_add_u32 v{T+2}, v{T+2}, v{T}', f'v_lshlrev_b32 v{T+2}, 6, v{T+2}',
                  f'v_and_b32 v{T+3}, 1, v{T+1}', f'v_lshl_add_u32 v{T+2}, v{T+3}, 3, v{T+2}',
                  f'v_lshrrev_b32 v{T+1}, 1, v{T+1}', f's_lshl_b32 s3, s{sFH}, 1', f'v_add_u32 v{T+1}, s3, v{T+1}',
                  f'v_and_b32 v{T+3}, 1, v{vG}', f'v_lshlrev_b32 v{T+3}, 1, v{T+3}', f'v_xor_b32 v{T+1}, v{T+1}, v{T+3}',
                  f'v_lshl_add_u32 v{base}, v{T+1}, 4, v{T+2}',
                  f'v_add_u32 v{base+1}, 49152, v{base}', f'v_add_u32 v{base+2}, 98304, v{base}']
        self._out(L, side, None)

    def qkv_units(self):
        QA, KA, BB, VA = S1, S1 + 16, S1 + 36, HR
        TRQ = vTMP
        units = []
        for s in range(18):
            st, sl = divmod(s, 2)
            buf = s % 2
            A = S0 + buf * 16
            Hf = S0 + 32 + buf * 4
            b, off = lds_base_sel((st % NSLOT) * SLOT + sl * 9216)
            reads = []
            for ti, toff in ((0, 0), (1, 32), (3, 64)):
                for e in range(2):
                    reads.append(f'ds_read_b64_tr_b16 {vr(A + ti*4 + e*2, 2)}, v{TRQ+b} offset:{off + toff + e*2304}')
            for e in range(2):
                reads.append(f'ds_read_b64_tr_b16 {vr(A + 8 + e*2, 2)}, v{TRQ+3+b} offset:{off + e*2304}')
            reads.append(f'ds_read_b128 {vr(Hf)}, v{vX0+2} offset:{s*1024}')
            def B(kt):
                return vr(Hf) if kt == 0 else breg(s, kt - 1)
            m = []
            def c(r): return '0' if s == 0 else vr(r)
            for tt in range(4):
                m.append(f'v_mfma_f32_16x16x32_bf16 {vr(QA+4*tt)}, {vr(A)}, {B(tt+1)}, {c(QA+4*tt)}')
            for kt in (1, 2, 3, 4, 0):
                m.append(f'v_mfma_f32_16x16x32_bf16 {vr(KA+4*kt)}, {vr(A+4)}, {B(kt)}, {c(KA+4*kt)}')
            for kt in (1, 2, 3, 4, 0):
                m.append(f'v_mfma_f32_16x16x32_bf16 {vr(BB+4*kt)}, {vr(A+8)}, {B(kt)}, {c(BB+4*kt)}')
            for kt in (1, 2, 3, 4, 0):
                m.append(f'v_mfma_f32_16x16x32_bf16 {vr(VA+4*kt)}, {B(kt)}, {vr(A+12)}, {c(VA+4*kt)}')
            units.append(dict(reads=reads, mfma=m, stage=st, last=(sl == 1)))
        return units

    def ffn_units(self, p, st0, accset):
        units = []
        if p < 4:
            for j in range(6):
                st = st0 + j
                for sl in range(3):
                    s = j * 3 + sl
                    for i in range(2):
                        u = len(units)
                        buf = u % 2
                        reads = []
                        for m in range(2):
                            b, off = lds_base_sel((st % NSLOT) * SLOT + m * 12288 + sl * 4096)
                            for e in range(2):
                                reads.append(f'ds_read_b64_tr_b16 {vr(AF + buf*8 + m*4 + e*2, 2)}, v{vTR + 3*i + b} offset:{off + e*512}')
                        mf = []
                        for m in range(2):
                            for tt in range(4):
                                a = accset + (i * 2 + m) * 16 + tt * 4
                                c = '0' if s == 0 else vr(a)
                                mf.append(f'v_mfma_f32_16x16x32_bf16 {vr(a)}, {vr(AF + buf*8 + m*4)}, {breg(s,tt)}, {c}')
                        units.append(dict(reads=reads, mfma=mf, stage=st, last=(sl == 2 and i == 1)))
        else:
            for j in range(3):
                st = st0 + j
                for sl in range(6):
                    s = j * 6 + sl
                    buf = len(units) % 2
                    reads = []
                    for m in range(2):
                        b, off = lds_base_sel((st % NSLOT) * SLOT + m * 12288 + sl * 2048)
                        for e in range(2):
                            reads.append(f'ds_read_b64_tr_b16 {vr(AF + buf*8 + m*4 + e*2, 2)}, v{self.vTRH + b} offset:{off + e*256}')
                    mf = []
                    for m in range(2):
                        for tt in range(4):
                            a = accset + m * 16 + tt * 4
                            c = '0' if s == 0 else vr(a)
                            mf.append(f'v_mfma_f32_16x16x32_bf16 {vr(a)}, {vr(AF + buf*8 + m*4)}, {breg(s,tt)}, {c}')
                    units.append(dict(reads=reads, mfma=mf, stage=st, last=(sl == 5)))
        return units

    def p2_units(self, panel, st0, accset):
        units = []
        for k in range(11):
            half = 0 if k < 6 else 1
            st = st0 + half
            kl = k if k < 6 else k - 6
            buf = (panel * 11 + k) % 2
            reads = []
            for i in range(2):
                b, off = lds_base_sel((st % NSLOT) * SLOT + kl * 4096)
                for e in range(2):
                    reads.append(f'ds_read_b64_tr_b16 {vr(AF + buf*8 + i*4 + e*2, 2)}, v{vTR + 3*i + b} offset:{off + e*2048}')
            mf = []
            for i in range(2):
                for tt in range(4):
                    a = accset + i * 16 + tt * 4
                    c = '0' if k == 0 else vr(a)
                    bi = (k * 4 + tt) * 4
                    mf.append(f'v_mfma_f32_16x16x32_bf16 {vr(a)}, {vr(AF + buf*8 + i*4)}, a[{bi}:{bi+3}], {c}')
            units.append(dict(reads=reads, mfma=mf, stage=st, last=(k == 5 or k == 10)))
        return units

    def silu_stream(self, accset, ntile, dests):
        sd = Side('silu')
        items = []
        for i in range(ntile):
            for tt in range(4):
                for r in range(4):
                    g = accset + (i * 2) * 16 + tt * 4 + r
                    u = accset + (i * 2 + 1) * 16 + tt * 4 + r
                    items.append((g, u, tt, i, r))
        nT = 8
        for q in range(0, len(items), 4):
            grp = items[q:q + 4]
            ts = [vTMP + ((q + k) % nT) for k in range(4)]
            for k, (g, u, tt, i, r) in enumerate(grp):
                sd.add(f'v_mul_f32 v{ts[k]}, v{g}, v{vC1+tt}')
            for k, (g, u, tt, i, r) in enumerate(grp):
                sd.add(f'v_exp_f32 v{ts[k]}, v{ts[k]}')
                sd.add(f'v_mul_f32 v{u}, v{g}, v{u}')
            for k, (g, u, tt, i, r) in enumerate(grp):
                sd.add(f'v_fma_f32 v{ts[k]}, v{ts[k]}, v{vC2+tt}, v{vC2+tt}')
            for k, (g, u, tt, i, r) in enumerate(grp):
                sd.add(f'v_rcp_f32 v{ts[k]}, v{ts[k]}')
            for k, (g, u, tt, i, r) in enumerate(grp):
                sd.add(f'v_mul_f32 v{u}, v{u}, v{ts[k]}')
            g, u, tt, i, r = grp[0]
            d = dests[i][tt]
            sd.add(f'v_cvt_pk_bf16_f32 v{d}, v{u}, v{u+1}')
            sd.add(f'v_cvt_pk_bf16_f32 v{d+1}, v{u+2}, v{u+3}')
        return sd

    def run_units(self, units, nxt_reads, sides, dma_for_stage, first_reads_done=True):
        E = self.E
        dma = Side('dma')
        cur_stage = None
        for ui, u in enumerate(units):
            if u['stage'] != cur_stage:
                cur_stage = u['stage']
                drain(E, [dma])
                dma = dma_for_stage(cur_stage) or Side()
            nr = units[ui + 1]['reads'] if ui + 1 < len(units) else nxt_reads
            nr = list(nr)
            if u['last']:
                drain(E, [dma])
                E.wait_lgkm(0)
                E.wait_vm_tag(('st', cur_stage + 1))
                E.barrier()
            mf = u['mfma']
            for i, m in enumerate(mf):
                E.emit(m)
                budget = 8
                if nr:
                    E.emit(nr.pop(0))
                    budget -= 4
                    if len(nr) > len(mf) - i - 1 and nr:
                        E.emit(nr.pop(0)); budget -= 4
                elif dma.q and i >= 4:
                    k = 0
                    while dma.q:
                        ins = dma.q.pop(0)
                        if isinstance(ins, list):
                            for y in ins:
                                E.emit(y)
                            budget -= 4 * len(ins)
                            k += len(ins)
                            if k >= 2: break
                            continue
                        E.emit(ins)
                        budget -= 4
                        k += 1
                        if ins.kind == 'dma':
                            budget = 0
                            break
                        if k >= 3:
                            break
                if budget > 0:
                    fill_gap(E, sides, budget)
            while nr:
                E.emit(nr.pop(0))

    def attention_stream(self):
        sd = Side('attn')
        QA, KA, BB, VA = S1, S1 + 16, S1 + 36, HR
        VP = HR + 20
        RK = S1 + 56
        RQ = 4
        BA, BBI = 8, 12
        BA0 = [S1 + 61, S1 + 62, S1 + 63, HR + 30]
        T0, T1 = vX0, vX0 + 1
        A = sd.add
        A(f's_lshl_b32 s3, s{sTG}, 8', f's_add_u32 s3, s3, {MISC}', f'v_lshl_add_u32 v{T0}, v{vT16}, 2, s3')
        for kt in range(5):
            A(f'ds_read_b32 v{RK+kt}, v{T0} offset:{RSTD + kt*64}')
        for tt in range(4):
            A(f'v_mul_f32 v{RQ+tt}, {hex(f2u(-SCALE))}, v{vC1+tt}')
        for r in range(4):
            A(f'v_lshl_add_u32 v{T0}, v{vG}, 2, {r}', f'v_sub_u32 v{T0}, v{T0}, v{vT16}',
              f'v_and_b32 v{T1}, 1, v{T0}',
              f'v_cmp_eq_u32 s[92:93], 0, v{T1}',
              f'v_cmp_le_i32 vcc, 2, v{T0}',
              f's_and_b64 vcc, vcc, s[92:93]',
              f'v_mov_b32 v{T1}, {hex(f2u(-1e30))}',
              f'v_cndmask_b32 v{BA+r}, v{T1}, 0, vcc',
              f'v_cmp_ge_i32 vcc, 0, v{T0}',
              f's_and_b64 vcc, vcc, s[92:93]',
              f'v_cndmask_b32 v{BBI+r}, v{T1}, 0, vcc')
        A(f's_lshl_b32 s3, s{sTG}, 6', f's_add_u32 s3, s3, s{sT0}')
        sd.group(f's_cmp_eq_u32 s3, 0', f's_cselect_b64 vcc, -1, 0')
        A(f'v_mov_b32 v{T1}, {hex(f2u(-1e30))}')
        for r in range(4):
            A(f'v_cndmask_b32 v{BA0[r]}, v{BA+r}, v{T1}, vcc')
        A(f'v_cmp_eq_u32 vcc, 0, v{vG}')
        for kt in range(5):
            k = KA + 4 * kt; b = BB + 4 * kt
            A(f'v_mul_f32 v{k}, v{k}, v{RK+kt}', f'v_mul_f32 v{k+1}, v{k+1}, v{RK+kt}',
              f'v_mul_f32 v{k+2}, v{k+2}, v{RK+kt}', f'v_mul_f32 v{k+3}, v{k+3}, v{RK+kt}',
              f'v_mul_f32 v{b+2}, v{b}, v{RK+kt}', f'v_mul_f32 v{b+3}, v{b+1}, v{RK+kt}',
              f'v_cvt_pk_bf16_f32 v{k}, v{k}, v{k+1}', f'v_cvt_pk_bf16_f32 v{k+1}, v{k+2}, v{k+3}',
              f'v_cvt_pk_bf16_f32 v{b+2}, v{b+2}, v{b+3}',
              f'v_mov_b32 v{k+2}, 0', f'v_mov_b32 v{k+3}, 0',
              f'v_mov_b32 v{b+3}, v{b+2}',
              f'v_permlane16_swap_b32 v{b+3}, v{k+2}')
        for tt in range(4):
            q = QA + 4 * tt; b = BB + 4 * (tt + 1)
            A(f'v_cndmask_b32 v{T0}, 0, v{RQ+tt}, vcc',
              f'v_mul_f32 v{q}, v{q}, v{RQ+tt}', f'v_mul_f32 v{q+1}, v{q+1}, v{RQ+tt}',
              f'v_mul_f32 v{q+2}, v{q+2}, v{RQ+tt}', f'v_mul_f32 v{q+3}, v{q+3}, v{RQ+tt}',
              f'v_mul_f32 v{b}, v{b}, v{T0}', f'v_mul_f32 v{b+1}, v{b+1}, v{T0}',
              f'v_cvt_pk_bf16_f32 v{q}, v{q}, v{q+1}', f'v_cvt_pk_bf16_f32 v{q+1}, v{q+2}, v{q+3}',
              f'v_cvt_pk_bf16_f32 v{q+2}, v{b}, v{b+1}', f'v_mov_b32 v{q+3}, 0')
        A(f's_mul_i32 s3, s{sW}, 640', f's_add_u32 s3, s3, {MISC + VXB}',
          f'v_lshlrev_b32 v{T0}, 1, v{vT16}', f'v_lshlrev_b32 v{T1}, 1, v{vLANE}', f'v_add_u32 v{T1}, 320, v{T1}',
          f'v_cmp_eq_u32 vcc, 2, v{vG}', f'v_min_u32 v{T1}, 340, v{T1}',
          f'v_cndmask_b32 v{T0}, v{T1}, v{T0}, vcc', f'v_add_u32 v{T0}, s3, v{T0}')
        for kt in range(5):
            b = BB + 4 * kt
            A(f'ds_write_b16 v{T0}, v{b+2} offset:{kt*32}', f'ds_write_b16_d16_hi v{T0}, v{b+2} offset:{160 + kt*32}')
        A(f'v_mul_u32_u24 v{T1}, 160, v{vT16}', f'v_lshl_add_u32 v{T1}, v{vG}, 3, v{T1}', f'v_add_u32 v{T1}, s3, v{T1}',
          f'v_mov_b32 v{T0}, {MISC + ZERO}', f'v_cmp_gt_u32 vcc, 2, v{vT16}', f'v_cndmask_b32 v{T1}, v{T0}, v{T1}, vcc')
        A(f's_lshl_b32 s3, s{sTG}, 8', f's_add_u32 s3, s3, {MISC}', f'v_lshl_add_u32 v{T0}, v{vG}, 4, s3')
        VXF = BB
        for kt in range(5):
            v = VA + 4 * kt
            A(f'ds_read_b128 {vr(RQ)}, v{T0} offset:{RSTD + kt*64}')
            for r in range(4):
                A(f'v_mul_f32 v{v+r}, v{v+r}, v{RQ+r}')
            A(f'v_cvt_pk_bf16_f32 v{VP+2*kt}, v{v}, v{v+1}', f'v_cvt_pk_bf16_f32 v{VP+2*kt+1}, v{v+2}, v{v+3}')
        VXF = VA
        for kt in range(5):
            A(f'ds_read_b64 {vr(VXF+2*kt, 2)}, v{T1} offset:{kt*32}')
        BA0C = VA + 12
        for r in range(4):
            A(f'v_mov_b32 v{BA0C+r}, v{BA0[r]}')
        PF = VA + 16
        SA, SB, OA, OB = BB, BB + 4, BB + 8, BB + 12
        M, Mx, L = RK, RK + 1, RK + 2
        A(f's_lshl_b32 s3, s{sW}, 12', f's_add_u32 s3, s3, {EXO}', f'v_lshl_add_u32 v{T0}, v{vLANE}, 4, s3')
        for tt in range(4):
            kt = tt + 1
            ba = BA0C if tt == 0 else BA
            A(f'v_mfma_f32_16x16x32_bf16 {vr(SA)}, {vr(KA+4*(kt-1))}, {vr(QA+4*tt)}, {vr(ba)}',
              f'v_mfma_f32_16x16x32_bf16 {vr(SB)}, {vr(KA+4*kt)}, {vr(QA+4*tt)}, {vr(BBI)}')
            A(f'v_max3_f32 v{M}, v{SA}, v{SA+1}, v{SA+2}', f'v_max3_f32 v{M}, v{M}, v{SA+3}, v{SB}',
              f'v_max3_f32 v{M}, v{M}, v{SB+1}, v{SB+2}', f'v_max_f32 v{M}, v{M}, v{SB+3}')
            A(*self.xlane_sum(M, Mx, 'v_max_f32'))
            for r in range(8):
                A(f'v_sub_f32 v{SA+r}, v{SA+r}, v{M}')
            for r in range(8):
                A(f'v_exp_f32 v{SA+r}, v{SA+r}')
            A(f'v_add_f32 v{L}, v{SA}, v{SA+1}')
            for r in range(2, 8):
                A(f'v_add_f32 v{L}, v{L}, v{SA+r}')
            for r in range(4):
                A(f'v_cvt_pk_bf16_f32 v{PF+r}, v{SA+2*r}, v{SA+2*r+1}')
            A(f'v_mfma_f32_16x16x32_bf16 {vr(OA)}, {vr(VP+2*(kt-1))}, {vr(PF)}, 0',
              f'v_mfma_f32_16x16x32_bf16 {vr(OB)}, {vr(VXF+2*(kt-1))}, {vr(PF)}, 0')
            A(*self.xlane_sum(L, Mx))
            A(f'v_rcp_f32 v{L}, v{L}')
            for r in range(8):
                A(f'v_mul_f32 v{OA+r}, v{OA+r}, v{L}')
            for r in range(4):
                A(f'v_cvt_pk_bf16_f32 v{OA+r}, v{OA+2*r}, v{OA+2*r+1}')
            A(f'ds_write_b128 v{T0}, {vr(OA)} offset:{tt*1024}')
        return sd

    def store_stream(self, panel, accset):
        sd = Side('store')
        for tt in range(4):
            a0 = accset + tt * 4
            a1 = accset + 16 + tt * 4
            sd.add(f'v_cvt_pk_bf16_f32 v{a0}, v{a0}, v{a0+1}', f'v_cvt_pk_bf16_f32 v{a0+1}, v{a0+2}, v{a0+3}',
                   f'v_cvt_pk_bf16_f32 v{a0+2}, v{a1}, v{a1+1}', f'v_cvt_pk_bf16_f32 v{a0+3}, v{a1+2}, v{a1+3}')
            sd.add(f's_add_u32 s77, s{sPB}, {panel*16*16384 + tt*2*16384}')
            sd.add(f'buffer_store_dwordx4 {vr(a0)}, v{vX0}, {srd(SW)}, s77 offen')
        return sd

    def main_kernel(self):
        E = self.E
        self.prologue()
        self.tr_setup('qkv', vTMP)
        self.tr_setup('full', vTR)
        E.emits(f'''s_mov_b32 s3, {HALO0}
        s_cmp_eq_u32 s{sTG}, 0
        s_cselect_b32 s3, s3, {HALO1}
        v_lshlrev_b32 v{vX0+2}, 4, v{vLANE}
        v_add_u32 v{vX0+2}, s3, v{vX0+2}''')
        for j in (2, 3, 4):
            self.dma_qkv(j)
        if self.dbg.get('ln'):
            regs = [f'a{i}' for i in range(256)] + list(range(XV, XV + 32)) + list(range(vC1, vC1 + 8))
            self.dump_regs(regs, 0)
        qu = self.qkv_units()
        def ffn_stage(st):
            k = st - 9
            return (k // 6, k % 6) if k < 24 else (4, k - 24)
        self.vTRH = vTR

        def dma_for_stage(st):
            t = st + 4
            sd = Side('dma')
            if st == 0:
                return sd
            if t <= 8:
                self.dma_qkv(t, sd)
            elif t <= 35:
                if t == 9:
                    self.ffn_dma_setup_full(sd)
                if t == 33:
                    self.ffn_dma_setup_half(sd)
                p, j = ffn_stage(t)
                self.dma_ffn(t, p, j, sd)
            elif t <= 37:
                if t == 36:
                    self.p2_setup(sd)
                self.dma_p2(t, (t - 36) // 2, (t - 36) % 2, sd)
            return sd
        E.wait_vm_tag(('st', 0))
        E.barrier()
        for x in qu[0]['reads']:
            E.emit(x)
        p0 = self.ffn_units(0, 9, S0)
        self.run_units(qu, p0[0]['reads'], [], dma_for_stage)
        if self.dbg.get('qkv'):
            regs = list(range(S1, S1 + 56)) + list(range(HR, HR + 20))
            self.dump_regs(regs, 0)
        att = self.attention_stream()
        p1 = self.ffn_units(1, 15, S1)
        self.run_units(p0, p1[0]['reads'], [att], dma_for_stage)
        drain(E, [att])
        d0 = [[HR + (i * 4 + tt) * 2 for tt in range(4)] for i in range(2)]
        sl = self.silu_stream(S0, 2, d0)
        sl.add(f's_lshl_b32 s3, s{sTG}, 13', f's_lshl_b32 s59, s{sFH}, 3', f's_add_u32 s3, s3, s59', f's_add_u32 s3, s3, {EXP0}',
               f'v_lshl_add_u32 v{vX0+1}, v{vLANE}, 4, s3')
        for i in range(2):
            for tt in range(4):
                sl.add(f'ds_write_b64 v{vX0+1}, {vr(d0[i][tt], 2)} offset:{(i*4+tt)*1024}')
        p2 = self.ffn_units(2, 21, S0)
        self.run_units(p1, p2[0]['reads'], [sl], dma_for_stage)
        drain(E, [sl])
        d1 = [[HR + (i * 4 + tt) * 2 for tt in range(4)] for i in range(2)]
        sl = self.silu_stream(S1, 2, d1)
        p3 = self.ffn_units(3, 27, S1)
        self.run_units(p2, p3[0]['reads'], [sl], dma_for_stage)
        drain(E, [sl])
        d2 = [[HR + 16 + (i * 4 + tt) * 2 for tt in range(4)] for i in range(2)]
        self.vTRH = 4
        pre = Side()
        self.tr_setup('half', 4, pre)
        sl = self.silu_stream(S0, 2, d2)
        sl.q = pre.q + sl.q
        ph = self.ffn_units(4, 33, S0)
        self.run_units(p3, ph[0]['reads'], [sl], dma_for_stage)
        drain(E, [sl])
        d3 = [[S0 + 32 + (i * 4 + tt) * 2 for tt in range(4)] for i in range(2)]
        sl = self.silu_stream(S1, 2, d3)
        self.tr_setup('p2', vTR, sl)
        pu = [self.p2_units(pn, 36 + 2 * pn, S0 if pn % 2 == 0 else S1) for pn in range(9)]
        self.run_units(ph, [], [sl], dma_for_stage)
        drain(E, [sl])
        dh = [[S1 + tt * 2 for tt in range(4)]]
        sl = self.silu_stream(S0, 1, dh)
        drain(E, [sl])
        E.wait_lgkm(0)
        E.barrier()
        E.emits(f'''s_mul_i32 s3, s{sTG}, 24576
        s_lshl_b32 s59, s{sFH}, 3
        s_add_u32 s3, s3, s59
        s_add_u32 s3, s3, {3*SLOT}
        v_lshl_add_u32 v{vX0+1}, v{vLANE}, 4, s3
        s_lshl_b32 s3, s{sTG}, 12
        s_add_u32 s3, s3, s59
        v_lshl_add_u32 v{vX0+2}, v{vLANE}, 4, s3''')
        for pi, d in enumerate((d1, d2, d3)):
            for i in range(2):
                for tt in range(4):
                    E.emit(f'ds_write_b64 v{vX0+1}, {vr(d[i][tt], 2)} offset:{((pi*2+i)*4+tt)*1024}')
        for tt in range(4):
            E.emit(f'ds_write_b64 v{vX0+2}, {vr(dh[0][tt], 2)} offset:{tt*1024}')
        E.wait_lgkm(0)
        E.barrier()
        E.emits(f'''v_lshlrev_b32 v{vX0+3}, 4, v{vLANE}
        s_lshl_b32 s3, s{sTG}, 13
        s_add_u32 s3, s3, {NONRING}
        v_add_u32 v{vX0}, s3, v{vX0+3}
        s_mul_i32 s3, s{sTG}, 24576
        s_add_u32 s3, s3, {3*SLOT}
        v_add_u32 v{vX0+1}, s3, v{vX0+3}
        s_lshl_b32 s3, s{sTG}, 12
        v_add_u32 v{vX0+2}, s3, v{vX0+3}''')
        for k in range(11):
            for tt in range(4):
                bi = (k * 4 + tt) * 4
                if k < 2:
                    a, off = vX0, 16384 + (k * 4 + tt) * 1024
                elif k < 8:
                    a, off = vX0 + 1, ((k - 2) * 4 + tt) * 1024
                elif k == 8:
                    a, off = vX0 + 2, tt * 1024
                else:
                    a, off = vX0, ((k - 9) * 4 + tt) * 1024
                E.emit(f'ds_read_b128 a[{bi}:{bi+3}], v{a} offset:{off}')
        if self.dbg.get('h'):
            self.dump_regs([f'a{i}' for i in range(176)], 0)
        E.wait_lgkm(0)
        E.barrier()
        for t in (38, 39, 40):
            self.dma_p2(t, (t - 36) // 2, (t - 36) % 2)
        E.emits(f'''s_mul_i32 s{sPB}, s{sTB}, {9*16*16384}
        s_lshl_b32 s3, s{sTG}, 3
        s_add_u32 s3, s3, s{sFH}
        s_lshl_b32 s3, s3, 14
        s_add_u32 s{sPB}, s{sPB}, s3
        s_lshl_b32 s3, s{sFC}, 10
        s_add_u32 s{sPB}, s{sPB}, s3
        v_lshlrev_b32 v{vX0}, 4, v{vLANE}''')
        for x in pu[0][0]['reads']:
            E.emit(x)

        def dma_p2_for_stage(st):
            t = st + 4
            sd = Side('dma')
            if st >= 37 and t <= 53:
                self.dma_p2(t, (t - 36) // 2, (t - 36) % 2, sd)
            return sd
        st_side = Side()
        for pn in range(9):
            nxt = pu[pn + 1][0]['reads'] if pn < 8 else []
            self.run_units(pu[pn], nxt, [st_side], dma_p2_for_stage)
            drain(E, [st_side])
            st_side = self.store_stream(pn, S0 if pn % 2 == 0 else S1)
        drain(E, [st_side])
        E.wait_vm(0)
        E.label('L_main_end')
        E.raw('s_endpgm')


def reduce_kernel():
    E = Emitter()
    E.emits('''s_cmp_ge_u32 s2, 576
    s_cbranch_scc1 L_red_end
    s_load_dwordx2 s[4:5], s[0:1], 0
    s_load_dwordx2 s[6:7], s[0:1], 56
    s_load_dwordx2 s[36:37], s[0:1], 72
    v_lshrrev_b32 v4, 6, v0
    v_and_b32 v1, 63, v0
    v_and_b32 v2, 15, v0
    v_readfirstlane_b32 s20, v4
    v_bfe_u32 v3, v0, 4, 2''')
    E.raw('s_waitcnt lgkmcnt(0)'); E.ws += 1
    for (r, p, sz) in ((8, 4, 2359296), (12, 6, 2359296), (16, 36, 0x10000000)):
        E.emits(f'''s_mov_b32 s{r}, s{p}
        s_mov_b32 s{r+1}, s{p+1}
        s_mov_b32 s{r+2}, {sz}
        s_mov_b32 s{r+3}, 0x20000''')
    E.emits('''s_lshl_b32 s21, s2, 2
    s_add_u32 s21, s21, s20
    s_lshl_b32 s22, s21, 14
    v_lshlrev_b32 v5, 4, v1''')
    for f in range(16):
        E.emit(f's_add_u32 s23, s22, {(f//4)*4096}')
        E.emit(f'buffer_load_dwordx4 v[{16+4*f}:{19+4*f}], v5, s[16:19], s23 offen offset:{(f%4)*1024}')
    E.emits('''s_mul_hi_u32 s24, s21, 0x1c71c72
    s_mul_i32 s25, s24, 144
    s_sub_u32 s25, s21, s25
    s_lshr_b32 s26, s25, 4
    s_and_b32 s27, s25, 15
    s_lshr_b32 s28, s27, 1
    s_and_b32 s29, s27, 1
    s_lshl_b32 s30, s24, 7
    s_lshl_b32 s31, s28, 4
    s_add_u32 s30, s30, s31
    v_add_u32 v6, s30, v2
    s_movk_i32 s31, 1152
    v_mul_lo_u32 v6, v6, s31
    s_lshl_b32 s32, s26, 7
    s_lshl_b32 s33, s29, 6
    s_add_u32 s32, s32, s33
    v_lshl_add_u32 v6, v3, 3, v6
    v_add_u32 v6, s32, v6
    buffer_load_dwordx2 v[8:9], v6, s[8:11], 0 offen
    buffer_load_dwordx2 v[10:11], v6, s[8:11], 0 offen offset:32
    s_mov_b32 s34, 0x00003f80
    s_mov_b32 s35, 0x3f800000''')
    A = 80
    for d in range(4):
        E.emit(f'v_lshlrev_b32 v{A+2*d}, 16, v{8+d}')
        E.emit(f'v_and_b32 v{A+2*d+1}, 0xffff0000, v{8+d}')
    for f in range(16):
        for d in range(4):
            x = 16 + 4 * f + d
            E.emit(f'v_lshlrev_b32 v{90+2*d}, 16, v{x}')
            E.emit(f'v_and_b32 v{91+2*d}, 0xffff0000, v{x}')
        for d in range(8):
            E.emit(f'v_add_f32 v{A+d}, v{A+d}, v{90+d}')
    for d in range(4):
        E.emit(f'v_cvt_pk_bf16_f32 v{8+d}, v{A+2*d}, v{A+2*d+1}')
    E.emits('''buffer_store_dwordx2 v[8:9], v6, s[12:15], 0 offen
    buffer_store_dwordx2 v[10:11], v6, s[12:15], 0 offen offset:32''')
    E.wait_vm(0)
    E.label('L_red_end')
    E.raw('s_endpgm')
    return E


HEADER = '''; Fused LayerNorm + sliding dilated attention + SwiGLU FFN for gfx950 (generated by own script)
; @launch kernel=fused_main_kernel grid=(256,1,1) block=(256,1,1) lds=163840
; @launch kernel=reduce_kernel grid=(576,1,1) block=(256,1,1) lds=0
.amdgcn_target "amdgcn-amd-amdhsa--gfx950"
.text
'''


def kdesc(name, vgpr, accum, sgpr=102):
    return f'''.amdhsa_kernel {name}
  .amdhsa_next_free_vgpr {vgpr}
  .amdhsa_next_free_sgpr {sgpr}
  .amdhsa_accum_offset {accum}
  .amdhsa_group_segment_fixed_size 0
  .amdhsa_kernarg_size 80
  .amdhsa_user_sgpr_count 2
  .amdhsa_user_sgpr_kernarg_segment_ptr 1
  .amdhsa_system_sgpr_workgroup_id_x 1
.end_amdhsa_kernel
'''


def build(dbg=None):
    g = Gen(dbg)
    g.main_kernel()
    r = reduce_kernel()
    s = HEADER
    s += '.globl fused_main_kernel\n.p2align 8\n.type fused_main_kernel,@function\nfused_main_kernel:\n' + g.E.text()
    s += '.globl reduce_kernel\n.p2align 8\n.type reduce_kernel,@function\nreduce_kernel:\n' + r.text()
    s += '.section .rodata,"a"\n.p2align 6\n' + kdesc('fused_main_kernel', 512, 256) + '.p2align 6\n' + kdesc('reduce_kernel', 98, 100, 48)
    sys.stderr.write(f'main: {g.E.n} instrs, nops {g.E.nops}, est time {g.E.time}, {g.E.stats}\n')
    return s


if __name__ == '__main__':
    out = sys.argv[1] if len(sys.argv) > 1 else 'k.s'
    dbg = {}
    for a in sys.argv[2:]:
        dbg[a] = True
    open(out, 'w').write(build(dbg))
```

```python
import re

REG_RE = re.compile(r'^([vas])(\d+)$')
RNG_RE = re.compile(r'^([vas])\[(\d+):(\d+)\]$')

TRANS = ('v_exp_f32', 'v_rcp_f32', 'v_rsq_f32', 'v_log_f32', 'v_sqrt_f32', 'v_sin_f32', 'v_cos_f32')


def regs_of(tok):
    tok = tok.strip()
    neg = tok.lstrip('-')
    if neg.startswith('abs(') and neg.endswith(')'):
        neg = neg[4:-1]
    if neg.startswith('|') and neg.endswith('|'):
        neg = neg[1:-1]
    m = REG_RE.match(neg)
    if m:
        return [(m.group(1), int(m.group(2)))]
    m = RNG_RE.match(neg)
    if m:
        return [(m.group(1), i) for i in range(int(m.group(2)), int(m.group(3)) + 1)]
    if neg == 'vcc':
        return [('vcc', 0)]
    if neg == 'exec':
        return [('exec', 0)]
    if neg == 'm0':
        return [('m0', 0)]
    return []


class Ins:
    __slots__ = ('text', 'op', 'rd', 'wr', 'kind', 'tag', 'cost', 'ops')

    def __init__(self, text, tag=None):
        self.text = text
        self.tag = tag
        t = text.split(';')[0].strip()
        parts = t.split(None, 1)
        self.op = op = parts[0]
        rest = parts[1] if len(parts) > 1 else ''
        ops = []
        for piece in rest.split(','):
            piece = piece.strip()
            if not piece:
                continue
            ops.append(piece)
        mods = ''
        if ops:
            sp = ops[-1].split(None, 1)
            ops[-1] = sp[0]
            if len(sp) > 1:
                mods = sp[1]
        self.ops = ops
        mo = re.search(r'offset:(\d+)', mods)
        if mo:
            lim = 65535 if op.startswith('ds_') else 4095
            assert int(mo.group(1)) <= lim, 'offset out of range: ' + text
        R = [regs_of(o) for o in ops]
        rd, wr = [], []
        kind = 'other'
        cost = 4
        if op.startswith('v_mfma'):
            kind = 'mfma'; wr = R[0]; rd = R[1] + R[2] + R[3]; cost = 8
        elif op.startswith('ds_read') or op.startswith('ds_bpermute') or op.startswith('ds_swizzle'):
            kind = 'dsr'; wr = R[0]; rd = sum(R[1:], [])
        elif op.startswith('ds_write'):
            kind = 'dsw'; rd = sum(R, [])
            cost = 8 if ('b128' in op) else 4
        elif op.startswith('buffer_load') or op.startswith('global_load'):
            if ' lds' in (' ' + mods) or op.startswith('global_load_lds'):
                kind = 'dma'; rd = sum(R, []) + [('m0', 0)]; cost = 12
            else:
                kind = 'vld'; wr = R[0]; rd = sum(R[1:], []); cost = 8
        elif op.startswith('buffer_store') or op.startswith('global_store'):
            kind = 'vst'; rd = sum(R, []); cost = 8
        elif op.startswith('buffer_atomic') or op.startswith('global_atomic'):
            kind = 'vst'; rd = sum(R, []); cost = 8
        elif op in ('buffer_inv', 'buffer_wbl2'):
            kind = 'vst'
        elif op.startswith('v_cmp'):
            kind = 'valu'; wr = R[0]; rd = sum(R[1:], [])
        elif op.startswith('v_readfirstlane') or op.startswith('v_readlane'):
            kind = 'valu'; wr = R[0]; rd = sum(R[1:], [])
        elif op.startswith('v_permlane'):
            kind = 'valu'; wr = R[0] + R[1]; rd = R[0] + R[1]
        elif op.startswith('v_'):
            kind = 'valu'; wr = R[0]; rd = sum(R[1:], [])
            base = op.replace('_e32', '').replace('_e64', '')
            if base in ('v_fmac_f32', 'v_dot2c_f32_bf16', 'v_pk_fmac_f16'):
                rd = rd + R[0]
            if base in TRANS:
                cost = 8
            if base == 'v_cndmask_b32' and len(ops) == 3:
                rd = rd + [('vcc', 0)]
            if base in ('v_add_co_u32', 'v_sub_co_u32', 'v_addc_co_u32'):
                wr = R[0] + R[1]; rd = sum(R[2:], [])
        elif op == 's_waitcnt' or op == 's_barrier' or op == 's_nop' or op == 's_endpgm' or op.startswith('s_cbranch') \
                or op == 's_branch' or op == 's_sleep' or op == 's_setprio':
            kind = 'ctl'
        elif op.startswith('s_cmp'):
            kind = 'salu'; rd = sum(R, [])
        elif op.startswith('s_load') or op.startswith('s_memtime') or op.startswith('s_memrealtime'):
            kind = 'smem'; wr = R[0]; rd = sum(R[1:], [])
        elif op.startswith('s_'):
            kind = 'salu'; wr = R[0]; rd = sum(R[1:], [])
            if 'saveexec' in op:
                wr = wr + [('exec', 0)]; rd = rd + [('exec', 0)]
        else:
            raise ValueError('unknown op ' + text)
        self.rd, self.wr, self.kind, self.cost = rd, wr, kind, cost

    @property
    def is_trans(self):
        return self.op.replace('_e32', '').replace('_e64', '') in TRANS

    @property
    def is_dpp(self):
        return '_dpp' in self.op or 'row_' in self.text


class Emitter:
    def __init__(self):
        self.out = []
        self.ws = 0
        self.lastw = {}
        self.lastc = {}
        self.laststore = {}
        self.lgkm = []
        self.vm = []
        self.time = 0
        self.mfma_free = 0
        self.issue_t = {}
        self.nops = 0
        self.n = 0
        self.stats = {}
        self.m0_ws = -100

    def raw(self, text):
        self.out.append(text)

    def label(self, name):
        self.out.append(name + ':')

    def comment(self, c):
        self.out.append('; ' + c)

    def need_ws(self, ins):
        need = 0
        pos = self.ws

        def req(prev_pos, n):
            nonlocal need
            d = pos - prev_pos - 1
            if d < n:
                need = max(need, n - d)
        for r in ins.rd:
            lw = self.lastw.get(r)
            if lw is None:
                continue
            p, k, w = lw
            if r[0] in 'va':
                if k == 'valu':
                    if w.op.startswith('v_dot'):
                        if ins.op == w.op and len(ins.ops) > 3 and r in regs_of(ins.ops[3]) and r not in regs_of(ins.ops[1]) + regs_of(ins.ops[2]):
                            pass
                        else:
                            req(p, 3)
                    if ins.kind == 'mfma':
                        req(p, 2)
                    if ins.op.startswith('v_permlane') or (ins.kind == 'valu' and ins.is_dpp):
                        req(p, 2)
                    if ins.op.startswith('v_readfirstlane') or ins.op.startswith('v_readlane'):
                        req(p, 1)
                    if w.is_trans and ins.kind in ('valu', 'mfma', 'dsw', 'vst', 'dsr', 'vld', 'dma') and not ins.is_trans:
                        req(p, 1)
                    if w.is_trans and ins.is_trans:
                        req(p, 1)
                elif k == 'mfma':
                    if ins.kind == 'mfma':
                        c = regs_of(ins.ops[3])
                        if r in c and r not in regs_of(ins.ops[1]) + regs_of(ins.ops[2]):
                            if ins.ops[3] == w.ops[0]:
                                pass
                            else:
                                req(p, 6)
                        else:
                            req(p, 8)
                    else:
                        req(p, 8)
            elif r[0] == 's' or r[0] == 'vcc':
                if k == 'valu':
                    if ins.kind == 'valu':
                        req(p, 2)
                        if ins.op.startswith('v_readlane') or ins.op.startswith('v_writelane'):
                            req(p, 4)
                    elif ins.kind in ('vld', 'vst', 'dma'):
                        req(p, 5)
                    else:
                        req(p, 4)
            elif r[0] == 'm0':
                if ins.kind == 'dma':
                    req(p, 1)
            elif r[0] == 'exec':
                pass
        for r in ins.wr:
            lw = self.lastw.get(r)
            if lw is not None and r[0] in 'va':
                p, k, w = lw
                if k == 'valu' and w.op.startswith('v_dot') and ins.op != w.op:
                    req(p, 3)
                if k == 'mfma':
                    if ins.kind == 'mfma' and ins.ops[0] == w.ops[0] and ins.ops[3] == w.ops[0]:
                        pass
                    elif ins.kind == 'mfma':
                        req(p, 8)
                    else:
                        req(p, 8)
            if ins.kind == 'valu':
                c = self.lastc.get(r)
                if c is not None:
                    req(c, 3)
                s = self.laststore.get(r)
                if s is not None:
                    req(s, 2)
            elif ins.kind in ('dsr', 'vld'):
                s = self.laststore.get(r)
                if s is not None:
                    req(s, 1)
        return need

    def need_waits(self, ins):
        touched = set(ins.rd) | set(ins.wr)
        l = None
        for i in range(len(self.lgkm) - 1, -1, -1):
            if self.lgkm[i] & touched:
                l = len(self.lgkm) - 1 - i
                break
        v = None
        for i in range(len(self.vm) - 1, -1, -1):
            if self.vm[i][0] & touched:
                v = len(self.vm) - 1 - i
                break
        return l, v

    def _wait(self, l=None, v=None):
        parts = []
        if v is not None:
            v = min(v, 63)
            parts.append(f'vmcnt({v})')
            if v < len(self.vm):
                self.vm = self.vm[len(self.vm) - v:] if v > 0 else []
        if l is not None:
            l = min(l, 15)
            parts.append(f'lgkmcnt({l})')
            if l < len(self.lgkm):
                self.lgkm = self.lgkm[len(self.lgkm) - l:] if l > 0 else []
        if parts:
            self.out.append('s_waitcnt ' + ' '.join(parts))
            self.ws += 1
            self.time += 4

    def wait_lgkm(self, n=0):
        if len(self.lgkm) > n:
            self._wait(l=n)

    def wait_vm(self, n=0):
        if len(self.vm) > n:
            self._wait(v=n)

    def wait_vm_tag(self, tag):
        for i in range(len(self.vm) - 1, -1, -1):
            if self.vm[i][1] == tag:
                self._wait(v=len(self.vm) - 1 - i)
                return

    def wait_regs(self, regs):
        t = set(regs)
        l = v = None
        for i in range(len(self.lgkm) - 1, -1, -1):
            if self.lgkm[i] & t:
                l = len(self.lgkm) - 1 - i; break
        for i in range(len(self.vm) - 1, -1, -1):
            if self.vm[i][0] & t:
                v = len(self.vm) - 1 - i; break
        if l is not None or v is not None:
            self._wait(l, v)

    def barrier(self):
        self.out.append('s_barrier')
        self.ws += 1
        self.time += 8

    def ready(self, text_or_ins, lds_lat=140):
        ins = text_or_ins if isinstance(text_or_ins, Ins) else Ins(text_or_ins)
        if self.need_ws(ins) > 0:
            return False
        l, v = self.need_waits(ins)
        if l is not None or v is not None:
            for r in set(ins.rd) | set(ins.wr):
                t = self.issue_t.get(r)
                if t is not None:
                    lat, t0 = t
                    if self.time - t0 < lat:
                        return False
        return True

    def emit(self, text, tag=None):
        ins = text if isinstance(text, Ins) else Ins(text, tag)
        if tag is not None:
            ins.tag = tag
        l, v = self.need_waits(ins)
        if l is not None or v is not None:
            self._wait(l, v)
        n = self.need_ws(ins)
        if n > 0:
            self.nops += n
            while n > 0:
                k = min(n, 16)
                self.out.append(f's_nop {k - 1}')
                self.ws += k
                self.time += 4 * k
                n -= k
        self.out.append(ins.text)
        self.n += 1
        self.stats[ins.kind] = self.stats.get(ins.kind, 0) + 1
        pos = self.ws
        if ins.op == 's_nop':
            self.ws += int(ins.ops[0]) + 1
        else:
            self.ws += 1
        if ins.kind == 'mfma':
            start = max(self.time, self.mfma_free)
            self.time = start + 8
            self.mfma_free = start + 16
        else:
            self.time += ins.cost
        for r in ins.wr:
            self.lastw[r] = (pos, ins.kind, ins)
            self.lastc.pop(r, None)
        if ins.kind == 'mfma':
            for r in regs_of(ins.ops[3]):
                self.lastc[r] = pos
        if ins.kind == 'vst' and ('x4' in ins.op or 'x3' in ins.op):
            for r in regs_of(ins.ops[0]):
                self.laststore[r] = pos
        if ins.kind in ('dsr', 'dsw'):
            self.lgkm.append(set(ins.wr))
            for r in ins.wr:
                self.issue_t[r] = (140, self.time)
        elif ins.kind in ('vld', 'vst', 'dma'):
            self.vm.append((set(ins.wr), ins.tag))
            for r in ins.wr:
                self.issue_t[r] = (3000, self.time)
        elif ins.kind == 'smem':
            pass
        return ins

    def emits(self, lines, tag=None):
        if isinstance(lines, str):
            lines = [x for x in lines.split('\n') if x.strip()]
        for x in lines:
            self.emit(x.strip(), tag)

    def text(self):
        return '\n'.join(self.out) + '\n'


class Side:
    def __init__(self, name=''):
        self.q = []
        self.name = name

    def add(self, *lines, tag=None):
        for l in lines:
            for x in l.split('\n'):
                x = x.strip()
                if x:
                    self.q.append(Ins(x, tag))

    def add_notrack(self, line):
        i = Ins(line); i.wr = []
        self.q.append(i)

    def group(self, *lines, tag=None):
        g = []
        for l in lines:
            for x in l.split('\n'):
                x = x.strip()
                if x:
                    g.append(Ins(x, tag))
        self.q.append(g)

    def __len__(self):
        return len(self.q)


def fill_gap(E, sides, budget, quota=None):
    used = 0
    progress = True
    while progress:
        progress = False
        for s in sides:
            if not s.q:
                continue
            ins = s.q[0]
            if isinstance(ins, list):
                if used > 0 and used + 4 * len(ins) > budget:
                    continue
                if not E.ready(ins[0]):
                    continue
                s.q.pop(0)
                for x in ins:
                    E.emit(x)
                used += 4 * len(ins)
                progress = used < budget
                break
            c = 16 if ins.kind == 'mfma' else ins.cost
            if ins.kind != 'mfma' and used + c > budget:
                continue
            if ins.kind == 'mfma' and used > 0:
                continue
            if not E.ready(ins):
                continue
            s.q.pop(0)
            E.emit(ins)
            if ins.kind == 'mfma':
                used = 0
            else:
                used += c
            progress = True
            break
    return used


def drain(E, sides):
    for s in sides:
        while s.q:
            x = s.q.pop(0)
            if isinstance(x, list):
                for y in x:
                    E.emit(y)
            else:
                E.emit(x)
```

```python
import sys, struct
from asmlib import *

SLOT = 24576
NSLOT = 5
NONRING = SLOT * NSLOT
HALO0 = NONRING
HALO1 = NONRING + 18432
MISC = NONRING + 36864
RSTD = 0
C2A = 576
ZERO = 1280
VXB = 1536
XA = 2 * SLOT
EXO = NONRING
EXP0 = NONRING + 16384
LOG2E = 1.4426950408889634
SCALE = 18 ** -0.5

def f2u(x):
    return struct.unpack('<I', struct.pack('<f', x))[0]

SX, SQ, SO, SF, SD, SW = 8, 12, 16, 20, 24, 28
def srd(n): return f's[{n}:{n+3}]'
sW, sTG, sFH, sTB, sFC, sT0 = 50, 51, 52, 53, 54, 55
sSEL_LO, sSEL_HI = 56, 57
sSOFF, sLW, sFB, sFHB, sPB = 72, 73, 74, 75, 76
sK2 = 60

vLANE, vT16, vG = 1, 2, 3
XV = 16
S0, S1 = 48, 112
AF = 176
HR = 192
vDMA = 224
vTR = 230
vC1 = 236
vC2 = 240
vTMP = 244
vX0 = 252
vQD = 175
vTRQ = (12, 13, 14)
vTRB = (172, 173, 174)

KORDER = [0, 1, 9, 10, 2, 3, 4, 5, 6, 7, 8]

def breg(s, tt):
    idx = (s * 4 + tt) * 4
    if idx < 256:
        return f'a[{idx}:{idx+3}]'
    b = XV + idx - 256
    return f'v[{b}:{b+3}]'

def vr(b, n=4):
    return f'v[{b}:{b+n-1}]'

P2SLOT = {36: 1*SLOT, 37: 2*SLOT}
P2ISSUE = {}
def _p2plan():
    free = {NONRING: 35, 1*SLOT: 36, 2*SLOT: 37, 3*SLOT: 37, 4*SLOT: 37, 0: 37}
    order = [NONRING, 1*SLOT, 2*SLOT, 3*SLOT, 4*SLOT, 0]
    load = {}
    for t in range(38, 54):
        sl = min(order, key=lambda x: (free[x], order.index(x)))
        iss = max(free[sl] + 1, t - 4)
        while load.get(iss, 0) >= 2: iss += 1
        assert iss <= t - 2 or (t == 38 and iss == 36), (t, iss)
        load[iss] = load.get(iss, 0) + 1
        P2SLOT[t] = sl
        P2ISSUE[t] = iss
        free[sl] = t
_p2plan()
def slot_off(st):
    return P2SLOT[st] if st >= 36 else (st % NSLOT) * SLOT

def lds_base_sel(off):
    b = off // 49152
    return b, off - b * 49152


class RawIns(Ins):
    def __init__(self, text):
        self.text = text; self.op = 'raw'; self.rd = []; self.wr = []; self.kind = 'salu'; self.tag = None; self.cost = 4; self.ops = []


class Gen:
    def __init__(self, dbg=None):
        self.E = Emitter()
        self.dbg = dbg or {}

    def xlane(self, a, b, op='v_add_f32'):
        return [f'v_mov_b32 v{b}, v{a}', f'v_permlane16_swap_b32 v{a}, v{b}', f'{op} v{a}, v{a}, v{b}',
                f'v_mov_b32 v{b}, v{a}', f'v_permlane32_swap_b32 v{a}, v{b}', f'{op} v{a}, v{a}, v{b}']

    def dump_regs(self, regs, slot):
        E = self.E
        E.wait_lgkm(0); E.wait_vm(0)
        E.emits(f'''s_lshl_b32 s90, s2, 2
        s_add_u32 s90, s90, s{sW}
        s_lshl_b32 s90, s90, 17
        s_add_u32 s90, s90, 0x4000000
        v_lshlrev_b32 v{vX0+3}, 2, v{vLANE}''')
        for i, r in enumerate(regs):
            rr = r if isinstance(r, str) else f'v{r}'
            E.emit(f's_add_u32 s91, s90, {(slot + i) * 256}')
            E.emit(f'buffer_store_dword {rr}, v{vX0+3}, {srd(SW)}, s91 offen')
        E.wait_vm(0)

    def stamp(self, i, fine=False):
        if not self.dbg.get('ts'):
            return
        if self.dbg.get('fine'):
            if not fine and i != 0:
                if i != 9: return
                i = 11
        elif fine:
            return
        E = self.E
        E.raw('s_memtime s[98:99]' if self.dbg.get('cyc') else 's_memrealtime s[98:99]')
        E.raw('s_waitcnt lgkmcnt(0)')
        E.lgkm = []
        E.raw(f's_mov_b32 s{78+i}, s98')
        E.ws += 3

    def stamp_store(self):
        if not self.dbg.get('ts'):
            return
        E = self.E
        E.emits(f'''s_lshl_b32 s90, s2, 2
        s_add_u32 s90, s90, s{sW}
        s_lshl_b32 s90, s90, 6
        s_add_u32 s90, s90, 0x4000000
        v_mov_b32 v4, 0''')
        for i in range(12):
            E.emit(f'v_mov_b32 v5, s{78+i}')
            E.emit(f'buffer_store_dword v5, v4, {srd(SW)}, s90 offen offset:{i*4}')
        E.wait_vm(0)

    def sprinkle_on(self, side, every):
        E = self.E
        self.spr = side; self.spr_every = every; self.spr_cnt = 0
        if not hasattr(E, '_emit0'):
            E._emit0 = E.emit
        gen = self
        def emit(text, tag=None):
            r = E._emit0(text, tag)
            if gen.spr is not None and gen.spr.q:
                gen.spr_cnt += 1
                if gen.spr_cnt >= gen.spr_every:
                    gen.spr_cnt = 0
                    x = gen.spr.q.pop(0)
                    if isinstance(x, list):
                        for y in x: E._emit0(y)
                    else:
                        E._emit0(x)
            return r
        E.emit = emit

    def sprinkle_off(self, drain_rest=True):
        E = self.E
        sp = self.spr
        self.spr = None
        E.emit = E._emit0
        if drain_rest and sp is not None:
            drain(E, [sp])

    def _out(self, lines, side, tag=None):
        for l in lines:
            if isinstance(l, (list, tuple)):
                if side is None:
                    for x in l: self.E.emit(x, tag=tag)
                else:
                    side.group(*l, tag=tag)
            else:
                if side is None: self.E.emit(l, tag=tag)
                else: side.add(l, tag=tag)

    def prologue(self):
        E = self.E
        E.emits('''s_cmp_ge_u32 s2, 256
        s_cbranch_scc1 L_main_end''')
        self.stamp(0)
        if not self.dbg.get('nopf'):
            E.raw('s_getpc_b64 s[96:97]'); E.raw('L_pc0:')
            E.raw('v_lshlrev_b32 v223, 7, v0')
            E.raw('global_load_dword v211, v223, s[96:97]')
            E.ws += 3
            E.vm.append((set(), None))
        E.emits(f'''s_load_dwordx4 s[36:39], s[0:1], 0
        s_load_dwordx2 s[40:41], s[0:1], 16
        s_load_dwordx4 s[44:47], s[0:1], 32
        s_load_dwordx2 s[42:43], s[0:1], 48
        s_load_dwordx2 s[48:49], s[0:1], 72
        v_lshrrev_b32 v4, 6, v0
        v_and_b32 v{vLANE}, 63, v0
        v_and_b32 v{vT16}, 15, v0
        v_readfirstlane_b32 s{sW}, v4
        v_bfe_u32 v{vG}, v0, 4, 2
        s_and_b32 s{sFC}, s2, 7
        s_lshl_b32 s{sFC}, s{sFC}, 1
        s_lshr_b32 s3, s2, 3
        s_and_b32 s3, s3, 1
        s_add_u32 s{sFC}, s{sFC}, s3
        s_lshr_b32 s{sTB}, s2, 4
        s_lshl_b32 s{sT0}, s{sTB}, 7
        v_lshrrev_b32 v5, 3, v{vLANE}
        v_and_b32 v6, 7, v{vLANE}
        s_lshr_b32 s{sTG}, s{sW}, 1
        s_and_b32 s{sFH}, s{sW}, 1
        s_lshl_b32 s3, s{sW}, 5
        s_add_u32 s3, s3, s{sT0}
        v_add_u32 v4, s3, v5
        v_mul_u32_u24 v4, 1152, v4
        v_lshl_add_u32 v4, v6, 4, v4
        s_movk_i32 s61, 9216
        s_movk_i32 s62, 18432
        s_movk_i32 s63, 27648
        s_mov_b32 s{sSEL_LO}, 0x00003f80
        s_mov_b32 s{sSEL_HI}, 0x3f800000''')
        E.raw('s_waitcnt lgkmcnt(0)')
        E.ws += 1
        self.stamp(1, True)
        def mk(r, p, sz):
            E.emits(f'''s_mov_b32 s{r}, s{p}
            s_mov_b32 s{r+1}, s{p+1}
            s_mov_b32 s{r+2}, {sz}
            s_mov_b32 s{r+3}, 0x20000''')
        mk(SX, 36, 2359296)
        RX, RH = 48, 192
        def xl(q):
            so = ['0', 's61', 's62', 's63'][q]
            for m in range(9):
                E.emit(f'buffer_load_dwordx4 {vr(RX + (q*9+m)*4)}, v4, {srd(SX)}, {so} offen offset:{m*128}', tag=('x', q))
        xl(0); xl(1)
        vm = Side('vm')
        E.emits(f'''s_lshl_b32 s3, s{sW}, 2
        s_add_u32 s3, s3, s{sT0}
        s_sub_u32 s3, s3, 16
        v_add_u32 v7, s3, v{vG}
        v_mul_i32_i24 v7, 1152, v7
        v_lshl_add_u32 v7, v{vT16}, 4, v7
        v_cmp_gt_u32 vcc, 8, v{vT16}
        v_mov_b32 v9, 0x40000000
        v_cndmask_b32 v8, v9, v7, vcc''')
        E.emit('v_mov_b32 v223, v8')
        for i in range(4):
            vm.add(f'buffer_load_dwordx4 {vr(RH + 4*i)}, v7, {srd(SX)}, 0 offen offset:{i*256}', tag=('x', 'h'))
        vm.add(f'buffer_load_dwordx4 {vr(RH + 16)}, v223, {srd(SX)}, 0 offen offset:1024', tag=('x', 'h'))
        for q in (2, 3):
            so = ['0', 's61', 's62', 's63'][q]
            for m in range(9):
                vm.add(f'buffer_load_dwordx4 {vr(RX + (q*9+m)*4)}, v4, {srd(SX)}, {so} offen offset:{m*128}', tag=('x', q))
        self.stamp(2, True)
        self.sprinkle_on(vm, 4)
        mk(SQ, 38, 1990656); mk(SO, 40, 663552); mk(SD, 42, 5308416); mk(SW, 48, 0x10000000)
        E.emits(f'''s_cmp_ge_u32 s{sW}, 2
        s_cselect_b32 s{SF}, s46, s44
        s_cselect_b32 s{SF+1}, s47, s45
        s_mov_b32 s{SF+2}, 5308416
        s_mov_b32 s{SF+3}, 0x20000''')
        self.ffn_dma_setup_full(None, T=8)
        self.stamp(3, True)
        E.emits(f'''v_mov_b32 v8, 0
        v_lshlrev_b32 v9, 2, v{vLANE}
        v_add_u32 v9, {MISC}, v9
        ds_write_b32 v9, v8 offset:{ZERO}''')
        E.emits(f'''v_lshrrev_b32 v8, 2, v6
        v_and_b32 v9, 3, v6
        v_lshlrev_b32 v8, 10, v8
        v_lshl_add_u32 v8, v9, 8, v8
        v_xor_b32 v9, v5, v6
        v_lshl_add_u32 v10, v9, 4, v8
        v_add_u32 v11, 128, v10
        s_mul_i32 s3, s{sW}, 18432
        s_add_u32 s3, s3, {XA}
        v_add_u32 v212, s3, v10
        v_add_u32 v213, s3, v11
        s_cmp_eq_u32 s{sW}, 1
        s_cselect_b32 s3, {HALO1}, s3
        v_add_u32 v214, s3, v10
        v_add_u32 v215, s3, v11''')
        E.emits(f'''s_lshl_b32 s3, s{sW}, 5
        s_add_u32 s3, s3, 16
        v_add_u32 v216, s3, v5
        v_lshlrev_b32 v216, 2, v216
        v_add_u32 v216, {MISC}, v216''')
        E.emits(f'''s_lshl_b32 s3, s{sW}, 2
        v_add_u32 v8, s3, v{vG}
        v_and_b32 v9, 7, v{vT16}
        v_xor_b32 v9, v8, v9
        v_lshrrev_b32 v10, 2, v{vT16}
        v_and_b32 v11, 3, v{vT16}
        v_lshlrev_b32 v10, 10, v10
        v_lshl_add_u32 v10, v11, 8, v10
        v_lshl_add_u32 v10, v9, 4, v10
        v_add_u32 v217, {HALO0}, v10
        v_add_u32 v9, {16384}, v217
        v_lshlrev_b32 v10, 4, v{vLANE}
        v_add_u32 v10, {MISC + VXB}, v10
        v_cmp_gt_u32 vcc, 8, v{vT16}
        v_cndmask_b32 v218, v10, v9, vcc
        v_lshlrev_b32 v219, 2, v8
        v_add_u32 v219, {MISC}, v219
        v_mov_b32 v220, 0x3f803f80''')
        E.emits(f'''v_xor_b32 v8, v{vT16}, v{vG}
        v_lshlrev_b32 v9, 8, v{vG}
        v_lshl_add_u32 v221, v8, 4, v9
        v_xor_b32 v222, 64, v221''')
        self.sprinkle_off()
        self.stamp(4, True)
        d01 = Side('d01')
        self.dma_ffn(0, 0, 0, d01)
        self.dma_ffn(1, 0, 1, d01)
        self.sprinkle_on(d01, 16)
        self.ln_group(RX, 36, 212, 216, 0, tag=('x', 0), red8=True)
        self.stamp(5, True)
        self.ln_group(RX + 36, 36, 213, 216, 32, tag=('x', 1), red8=True)
        self.sprinkle_off()
        pf = Side('pf')
        self.pf_gu(pf, 7, 94, 223)
        self.pf_code(pf, 7, 94, 223)
        self.sprinkle_on(pf, 2)
        self.ln_group(RH, 20, None, 219, 0, tag=('x', 'h'), red8=False)
        self.sprinkle_off()
        self.stamp(6, True)
        E.wait_lgkm(0)
        E.barrier()
        E.emits(f'''s_mul_i32 s3, s{sTG}, 36864
        s_add_u32 s3, s3, {XA}
        v_add_u32 v7, s3, v221
        v_add_u32 v8, s3, v222''')
        rd = Side()
        for s in range(18):
            a = 7 + (s & 1)
            rd.add(f'ds_read_b128 {breg(s,0)}, v{a} offset:{s*1024}')
            rd.add(f'ds_read_b128 {breg(s,2)}, v{a} offset:{18432 + s*1024}')
        self.ln_group(RX + 72, 36, None, 216, 64, tag=('x', 2), red8=True, side=rd)
        drain(E, [rd])
        E.wait_lgkm(0)
        E.barrier()
        wr = Side()
        for m in range(9):
            wr.add(f'ds_write_b128 v214, {vr(RX + 72 + 4*m)} offset:{m*2048}')
        self.ln_group(RX + 108, 36, 215, 216, 96, tag=('x', 3), red8=True, side=wr)
        drain(E, [wr])
        self.stamp(7, True)
        E.wait_lgkm(0)
        E.barrier()
        E.emits(f'''s_mov_b32 s3, {HALO1}
        s_cmp_eq_u32 s{sTG}, 0
        s_cselect_b32 s3, s3, {XA + 3*18432}
        v_add_u32 v9, s3, v221
        v_add_u32 v10, s3, v222
        s_lshl_b32 s3, s{sTG}, 6
        s_add_u32 s3, s3, 16
        v_add_u32 v11, s3, v{vT16}
        v_lshlrev_b32 v11, 2, v11
        v_add_u32 v11, {MISC}, v11''')
        for tt in range(4):
            E.emit(f'ds_read_b32 v{vC1+tt}, v11 offset:{RSTD + tt*64}')
            E.emit(f'ds_read_b32 v{vC2+tt}, v11 offset:{C2A + tt*64}')
        for s in range(18):
            E.emit(f'ds_read_b128 {breg(s,1)}, v{7 + (s&1)} offset:{s*1024}')
            E.emit(f'ds_read_b128 {breg(s,3)}, v{9 + (s&1)} offset:{s*1024}')
        self.tr_setup('full', vTR)
        E.emits(f'''s_mov_b32 s3, {HALO0}
        s_cmp_eq_u32 s{sTG}, 0
        s_cselect_b32 s3, s3, {HALO1}
        v_add_u32 v{vX0+2}, s3, v221
        v_add_u32 v{vX0+3}, s3, v222''')
        for tt in range(4):
            E.emit(f'v_mul_f32 v{vC1+tt}, {hex(f2u(-LOG2E))}, v{vC1+tt}')
        E.wait_lgkm(0)
        self.stamp(8, True)
        E.barrier()

    def pf_qkv(self, sd, T, S, D):
        if self.dbg.get('nopf'): return
        A = sd.add
        A(f's_lshr_b32 s{S}, s2, 3', f's_and_b32 s{S+1}, s2, 7',
          f's_mul_i32 s{S+2}, s{sW}, 27', f'v_min_u32 v{T}, 26, v{vLANE}', f'v_add_u32 v{T}, s{S+2}, v{T}',
          f'v_mul_u32_u24 v{T+1}, 43, v{T}', f'v_lshrrev_b32 v{T+1}, 8, v{T+1}', f'v_mul_u32_u24 v{T+2}, 6, v{T+1}', f'v_sub_u32 v{T+2}, v{T}, v{T+2}',
          f'v_lshrrev_b32 v{T}, 1, v{T+2}', f'v_and_b32 v{T+2}, 1, v{T+2}', f'v_mul_u32_u24 v{T+1}, 3456, v{T+1}', f'v_mul_u32_u24 v{T}, 1152, v{T}',
          f'v_add_u32 v{T+1}, v{T+1}, v{T}', f'v_lshl_add_u32 v{T+1}, v{T+2}, 7, v{T+1}',
          f's_mul_i32 s{S+2}, s{S}, {18*3456}', f's_mul_i32 s{S+3}, s{S+1}, 144', f's_add_u32 s{S+2}, s{S+2}, s{S+3}')
        sd.add_notrack(f'buffer_load_dword v{D}, v{T+1}, {srd(SQ)}, s{S+2} offen')

    def pf_code(self, sd, T, S, D):
        if self.dbg.get('nopf'): return
        A = sd.add
        sd.q.append([RawIns('s_getpc_b64 s[96:97]'), RawIns('L_pc:')])
        A(f's_lshr_b32 s{S}, s2, 3', f's_lshl_b32 s{S}, s{S}, 2', f's_add_u32 s{S}, s{S}, s{sW}', f's_lshl_b32 s{S}, s{S}, 8',
          f's_add_u32 s{S}, s{S}, 24576',
          f'v_min_u32 v{T}, 1, v{vLANE}', f'v_lshlrev_b32 v{T}, 7, v{T}', f'v_add_u32 v{T}, s{S}, v{T}')
        sd.q.append([RawIns(f'v_min_u32 v{T}, L_main_end-L_pc, v{T}')])
        sd.add_notrack(f'global_load_dword v{D}, v{T}, s[96:97]')

    def pf_gu(self, sd, T, S, D):
        if self.dbg.get('nopf'): return
        A = sd.add
        A(f's_lshr_b32 s{S}, s2, 3', f's_and_b32 s{S+1}, s2, 7',
          f'v_mul_u32_u24 v{T}, 57, v{vLANE}', f'v_lshrrev_b32 v{T}, 9, v{T}', f'v_mul_u32_u24 v{T+1}, 9, v{T}',
          f'v_sub_u32 v{T+1}, v{vLANE}, v{T+1}', f'v_mul_u32_u24 v{T}, 9216, v{T}', f'v_lshl_add_u32 v{T}, v{T+1}, 7, v{T}',
          f's_mul_i32 s{S+2}, s{S}, 18', f's_and_b32 s{S+3}, s{sW}, 1', f's_mul_i32 s{S+3}, s{S+3}, 9', f's_add_u32 s{S+2}, s{S+2}, s{S+3}',
          f's_mul_i32 s{S+2}, s{S+2}, 9216', f's_mul_i32 s{S+3}, s{S+1}, 1152', f's_add_u32 s{S+2}, s{S+2}, s{S+3}')
        sd.add_notrack(f'buffer_load_dword v{D}, v{T}, {srd(SF)}, s{S+2} offen')
        A(f'v_add_u32 v{T+1}, 64, v{vLANE}', f'v_min_u32 v{T+1}, 80, v{T+1}', f'v_mul_u32_u24 v{T}, 57, v{T+1}', f'v_lshrrev_b32 v{T}, 9, v{T}',
          f'v_mul_u32_u24 v{T+3}, 9, v{T}', f'v_sub_u32 v{T+1}, v{T+1}, v{T+3}',
          f'v_mul_u32_u24 v{T}, 9216, v{T}', f'v_lshl_add_u32 v{T}, v{T+1}, 7, v{T}')
        sd.add_notrack(f'buffer_load_dword v{D}, v{T}, {srd(SF)}, s{S+2} offen')

    def pf_down(self, sd, T, S):
        if self.dbg.get('nopf'): return
        A = sd.add
        A(f's_lshr_b32 s{S}, s2, 3', f's_and_b32 s{S+1}, s2, 7',
          f'v_min_u32 v{T}, 40, v{vLANE}', f'v_lshlrev_b32 v{T}, 7, v{T}',
          f's_mul_i32 s{S+2}, s{S+1}, {5184*128}', f's_mul_i32 s{S+3}, s{S}, {162*128}', f's_add_u32 s{S+2}, s{S+2}, s{S+3}',
          f's_mul_i32 s{S+3}, s{sW}, {41*128}', f's_add_u32 s{S+2}, s{S+2}, s{S+3}')
        sd.add_notrack(f'buffer_load_dword v{T+1}, v{T}, {srd(SD)}, s{S+2} offen')
        A(f'v_min_u32 v{T}, 5, v{vLANE}', f'v_lshlrev_b32 v{T}, 7, v{T}',
          f's_mul_i32 s{S+2}, s{S+1}, {648*128}', f's_mul_i32 s{S+3}, s{S}, {21*128}', f's_add_u32 s{S+2}, s{S+2}, s{S+3}',
          f's_mul_i32 s{S+3}, s{sW}, {6*128}', f's_add_u32 s{S+2}, s{S+2}, s{S+3}')
        sd.add_notrack(f'buffer_load_dword v{T+1}, v{T}, {srd(SO)}, s{S+2} offen')

    def ln_finish(self, s1, s2, negmean, c2, rstd):
        self.E.emits(f'''v_mul_f32 v{negmean}, {hex(f2u(-1.0/576))}, v{s1}
        v_mul_f32 v{c2}, {hex(f2u(1.0/576))}, v{s2}
        v_fma_f32 v{c2}, -v{negmean}, v{negmean}, v{c2}
        v_max_f32 v{c2}, 0, v{c2}
        v_add_f32 v{c2}, {hex(f2u(1e-5))}, v{c2}
        v_rsq_f32 v{rstd}, v{c2}''')

    def ln_group(self, R, n, wr, statidx, statoff, tag, red8, side=None):
        E = self.E
        a1, b1 = 11, 13
        ONES = 220
        E.wait_vm_tag(tag)
        def sidepop():
            if side is not None and side.q:
                E.emit(side.q.pop(0))
        ac = [vTMP + i for i in range(8)]
        for i in range(0, n, 4):
            for k in range(4):
                if i == 0:
                    E.emit(f'v_dot2_f32_bf16 v{ac[k]}, v{R+i+k}, v{ONES}, 0')
                    E.emit(f'v_dot2_f32_bf16 v{ac[4+k]}, v{R+i+k}, v{R+i+k}, 0')
                else:
                    E.emit(f'v_dot2c_f32_bf16 v{ac[k]}, v{R+i+k}, v{ONES}')
                    E.emit(f'v_dot2c_f32_bf16 v{ac[4+k]}, v{R+i+k}, v{R+i+k}')
            sidepop(); sidepop()
        E.emits(f'''v_add_f32 v{ac[0]}, v{ac[0]}, v{ac[1]}
        v_add_f32 v{ac[4]}, v{ac[4]}, v{ac[5]}
        v_add_f32 v{ac[2]}, v{ac[2]}, v{ac[3]}
        v_add_f32 v{ac[6]}, v{ac[6]}, v{ac[7]}
        v_add_f32 v{a1}, v{ac[0]}, v{ac[2]}
        v_add_f32 v{b1}, v{ac[4]}, v{ac[6]}''')
        if red8:
            steps = ['quad_perm:[1,0,3,2]', 'quad_perm:[2,3,0,1]', 'row_half_mirror']
        else:
            steps = ['row_ror:1', 'row_ror:2', 'row_ror:4', 'row_ror:8']
        for st in steps:
            E.emit(f'v_add_f32_dpp v{a1}, v{a1}, v{a1} {st} row_mask:0xf bank_mask:0xf')
            E.emit(f'v_add_f32_dpp v{b1}, v{b1}, v{b1} {st} row_mask:0xf bank_mask:0xf')
            sidepop()
        NM, C2, RS = 12, 14, 15
        self.ln_finish(a1, b1, NM, C2, RS)
        E.emits(f'''ds_write_b32 v{statidx}, v{RS} offset:{RSTD + statoff}
        ds_write_b32 v{statidx}, v{C2} offset:{C2A + statoff}''')
        T = vTMP
        for i in range(n + 2):
            if i < n:
                t = T + (i % 4) * 2
                E.emit(f'v_dot2_f32_bf16 v{t}, v{R+i}, s{sSEL_LO}, v{NM}')
                E.emit(f'v_dot2_f32_bf16 v{t+1}, v{R+i}, s{sSEL_HI}, v{NM}')
            if i >= 2:
                k = i - 2
                t = T + (k % 4) * 2
                E.emit(f'v_cvt_pk_bf16_f32 v{R+k}, v{t}, v{t+1}')
                if k % 4 == 3:
                    m = k // 4
                    if not red8:
                        if m < 4: E.emit(f'ds_write_b128 v217, {vr(R + k - 3)} offset:{m*4096}')
                        else: E.emit(f'ds_write_b128 v218, {vr(R + k - 3)}')
                    elif wr is not None:
                        E.emit(f'ds_write_b128 v{wr}, {vr(R + k - 3)} offset:{m*2048}')
            if i % 2 == 0:
                sidepop()

    def qkv_dma_setup(self, side, T):
        L = [f's_lshl_b32 s71, s{sW}, 10', 's_sub_u32 s71, s71, 4096',
             f'v_lshrrev_b32 v{T}, 3, v{vLANE}', f'v_and_b32 v{T+1}, 7, v{vLANE}',
             f'v_and_b32 v{T+2}, 2, v{T}', f'v_xor_b32 v{T+1}, v{T+1}, v{T+2}',
             f's_lshl_b32 s94, s{sFH}, 2', f'v_xor_b32 v{T+1}, s94, v{T+1}',
             f'v_min_u32 v{T+1}, 5, v{T+1}',
             f'v_subrev_u32 v{T+3}, 3, v{T+1}', f'v_min_u32 v{T+3}, v{T+3}, v{T+1}',
             f'v_sub_u32 v{T+1}, v{T+1}, v{T+3}', f'v_mul_u32_u24 v{T+1}, 12, v{T+1}',
             f'v_lshlrev_b32 v{T+2}, 4, v{T+3}', f'v_min_u32 v{T+2}, 20, v{T+2}', f'v_add_u32 v{T+2}, v{T+2}, v{T+1}',
             f's_lshl_b32 s94, s{sW}, 3', f'v_add_u32 v{T}, s94, v{T}', f'v_mul_u32_u24 v{T}, 3456, v{T}',
             f'v_add_u32 v{T}, v{T}, v{T+2}', f's_mul_i32 s94, s{sFC}, 72', f'v_add_u32 v{vQD}, s94, v{T}']
        self._out(L, side)

    def dma_qkv(self, st, j, side=None):
        lines = []
        for sl in range(2):
            lines.append([f's_add_u32 s6, s38, {(64*j + 32*sl)*3456}', 's_addc_u32 s7, s39, 0'])
            for seg in range(3):
                lines.append(f's_add_u32 m0, s71, {slot_off(st) + (sl*3+seg)*4096 - seg*1152 + 4096}')
                lines.append(f'global_load_lds_dwordx4 v{vQD}, s[6:7] offset:{seg*1152}')
        self._out(lines, side, ('st', st))

    def ffn_dma_setup_full(self, side=None, T=100):
        L = [f's_lshr_b32 s94, s{sW}, 1', f's_mul_i32 s{sLW}, s94, 12288', f's_and_b32 s94, s{sW}, 1',
             f's_mul_i32 s95, s94, 6144', f's_add_u32 s{sLW}, s{sLW}, s95',
             f's_mul_i32 s95, s94, {48*9216}',
             f'v_lshrrev_b32 v{T}, 3, v{vLANE}', f'v_and_b32 v{T+1}, 7, v{vLANE}',
             f'v_and_b32 v{T+2}, 2, v{T}', f'v_xor_b32 v{T+1}, v{T+1}, v{T+2}',
             f'v_mul_u32_u24 v{T}, 9216, v{T}',
             f'v_add_u32 v{T}, s95, v{T}',
             f'v_xor_b32 v{T+2}, 4, v{T+1}',
             f'v_lshl_add_u32 v{T+1}, v{T+1}, 4, v{T}',
             f'v_lshl_add_u32 v{T+2}, v{T+2}, 4, v{T}']
        for n in range(6):
            L.append(f'v_add_u32 v{vDMA+n}, {n*8*9216 - (n%4)*1024}, v{T+1+(n&1)}')
        L += [f's_mul_i32 s{sFB}, s{sFC}, 576', f's_and_b32 s94, s{sFC}, 1',
              f's_lshl_b32 s95, s94, 6', f's_add_u32 s{sFHB}, s{sFB}, 512',
              [f's_cmp_eq_u32 s94, 1', f's_cselect_b32 s{sFHB}, s{sFB}, s{sFHB}'],
              f's_add_u32 s{sFB}, s{sFB}, s95',
              [f's_add_u32 s32, s{SF}, s{sFB}', f's_addc_u32 s33, s{SF+1}, 0'],
              [f's_add_u32 s34, s{SF}, s{sFHB}', f's_addc_u32 s35, s{SF+1}, 0']]
        self._out(L, side)

    def ffn_dma_setup_half(self, side=None):
        T = 8
        L = [f's_and_b32 s94, s{sW}, 1', f's_mul_i32 s95, s94, {96*9216}',
             f'v_lshrrev_b32 v{T}, 2, v{vLANE}', f'v_and_b32 v{T+1}, 3, v{vLANE}',
             f'v_lshrrev_b32 v{T+2}, 3, v{T}', f'v_lshlrev_b32 v{T+2}, 1, v{T+2}',
             f'v_xor_b32 v{T+1}, v{T+1}, v{T+2}',
             f'v_mul_u32_u24 v{T}, 9216, v{T}', f'v_add_u32 v{T}, s95, v{T}',
             f'v_lshl_add_u32 v{T}, v{T+1}, 4, v{T}']
        for n in range(6):
            L.append(f'v_add_u32 v{vDMA+n}, {n*16*9216 - (n%4)*1024}, v{T}')
        self._out(L, side)

    def dma_ffn(self, st, p, j, side=None):
        if p < 4:
            lines = [[f's_add_u32 s4, s32, {j*96*9216 + p*128}', 's_addc_u32 s5, s33, 0']]
        else:
            lines = [[f's_add_u32 s4, s34, {j*192*9216}', 's_addc_u32 s5, s35, 0']]
        for n in range(6):
            if n % 4 == 0:
                lines.append(f's_add_u32 m0, s{sLW}, {slot_off(st) + n*1024}')
            lines.append(f'global_load_lds_dwordx4 v{vDMA+n}, s[4:5] offset:{(n%4)*1024}')
        self._out(lines, side, ('st', st))

    def p2_setup(self, side=None):
        T = 8
        L = [f's_lshl_b32 s{sLW}, s{sW}, 10',
             f'v_lshrrev_b32 v{T}, 3, v{vLANE}', f'v_and_b32 v{T+1}, 7, v{vLANE}',
             f'v_and_b32 v{T+2}, 6, v{T}', f'v_xor_b32 v{T+1}, v{T+1}, v{T+2}',
             f'v_mul_u32_u24 v{T+2}, 1152, v{T}',
             f'v_lshl_add_u32 v{vDMA}, v{T+1}, 4, v{T+2}',
             [f's_cmp_lt_u32 s{sW}, 2', f's_cselect_b32 s94, 8, 2'], [f's_cmp_eq_u32 s{sW}, 3', f's_cselect_b32 s94, 0, s94'],
             f'v_mov_b32 v{T+2}, 0x40000000',
             [f'v_cmp_gt_u32 vcc, s94, v{T}', 's_nop 1', f'v_cndmask_b32 v{vDMA+1}, v{T+2}, v{vDMA}, vcc'],
             f's_lshr_b32 s94, s{sW}, 1', f's_and_b32 s95, s{sW}, 1', f's_lshl_b32 s95, s95, 3',
             f's_lshl_b32 s96, s94, 5', f's_add_u32 s96, s96, s95', f's_lshr_b32 s97, s{sFB}, 1', f's_add_u32 s96, s96, s97',
             f's_mul_i32 s96, s96, 1152']
        for p in range(4):
            for i in range(2):
                L.append(f's_add_u32 s{sK2 + 2*p + i}, s96, {(64*p + 16*i)*1152}')
        L += [f's_lshl_b32 s96, s94, 4', f's_add_u32 s96, s96, s95', f's_lshr_b32 s97, s{sFHB}, 1', f's_add_u32 s97, s96, s97',
              f's_mul_i32 s{sK2+8}, s97, 1152',
              f's_mul_i32 s97, s{sFC}, 36', f's_add_u32 s96, s96, s97',
              f's_mul_i32 s{sK2+9}, s96, 1152', f's_add_u32 s{sK2+10}, s{sK2+9}, {18*1152}']
        self._out(L, side)

    def dma_p2(self, st, side=None):
        half = (st - 36) % 2
        pos = range(0, 6) if half == 0 else range(6, 11)
        lines = []
        for n, ps in enumerate(pos):
            k = KORDER[ps]
            lines.append(f's_add_u32 m0, s{sLW}, {slot_off(st) + n*4096}')
            if k < 9:
                t = vDMA + 2 + (n % 2)
                lines.insert(len(lines) - 1, f'v_add_u32 v{t}, s{sK2+k}, v{vDMA}')
                lines.append(f'global_load_lds_dwordx4 v{t}, s[42:43]')
            else:
                lines.append(f'buffer_load_dwordx4 v{vDMA+1}, {srd(SO)}, s{sK2+k} offen lds')
        if half == 1:
            lines += [f'v_add_u32 v{vDMA}, 128, v{vDMA}', f'v_add_u32 v{vDMA+1}, 128, v{vDMA+1}']
        self._out(lines, side, ('st', st))

    def tr_setup(self, kind, base, side=None):
        T = vX0
        L = [f'v_bfe_u32 v{T}, v{vLANE}, 2, 2', f'v_and_b32 v{T+1}, 3, v{vLANE}']
        if kind == 'qkv':
            q, bq = vTRQ[0], vTRB[0]
            L += [f'v_lshlrev_b32 v{T+2}, 3, v{vG}', f'v_add_u32 v{T+2}, v{T+2}, v{T}', f'v_lshlrev_b32 v{T+2}, 7, v{T+2}',
                  f'v_lshrrev_b32 v{T}, 1, v{T}', f'v_and_b32 v{T+3}, 1, v{vG}', f'v_lshl_add_u32 v{T}, v{T+3}, 1, v{T}',
                  f'v_lshlrev_b32 v{T}, 1, v{T}',
                  f's_mul_i32 s3, s{sFH}, 3',
                  f'v_lshrrev_b32 v{T+3}, 1, v{T+1}', f'v_add_u32 v{T+3}, s3, v{T+3}', f'v_xor_b32 v{T+3}, v{T+3}, v{T}',
                  f'v_lshl_add_u32 v{q}, v{T+3}, 4, v{T+2}', f'v_and_b32 v{T+3}, 1, v{T+1}', f'v_lshl_add_u32 v{q}, v{T+3}, 3, v{q}',
                  f's_add_u32 s3, s3, 2', f'v_xor_b32 v{T+3}, s3, v{T}', f'v_lshl_add_u32 v{bq}, v{T+3}, 4, v{T+2}',
                  f'v_min_u32 v{T+1}, 2, v{T+1}', f'v_lshl_add_u32 v{bq}, v{T+1}, 12, v{bq}', f'v_add_u32 v{bq}, 8, v{bq}']
            for o in (q, bq):
                L += [f'v_add_u32 v{o+1}, 49152, v{o}', f'v_add_u32 v{o+2}, 98304, v{o}']
        elif kind in ('full', 'p2'):
            sh = 3 if kind == 'full' else 2
            L += [f'v_lshlrev_b32 v{T+2}, {sh}, v{vG}', f'v_add_u32 v{T+2}, v{T+2}, v{T}', f'v_lshlrev_b32 v{T+2}, 7, v{T+2}',
                  f'v_and_b32 v{T+3}, 1, v{T+1}', f'v_lshl_add_u32 v{T+2}, v{T+3}, 3, v{T+2}',
                  f'v_lshrrev_b32 v{T+1}, 1, v{T+1}', f'v_lshl_add_u32 v{T+2}, v{T+1}, 4, v{T+2}',
                  f'v_lshrrev_b32 v{T}, 1, v{T}', f'v_and_b32 v{T+3}, 1, v{vG}', f'v_lshl_add_u32 v{T}, v{T+3}, 1, v{T}',
                  f's_lshl_b32 s3, s{sFH}, 1']
            for i in range(2):
                L += [f'v_xor_b32 v{T+1}, s3, v{T}', f'v_lshl_add_u32 v{base+3*i}, v{T+1}, 5, v{T+2}',
                      f'v_add_u32 v{base+3*i+1}, 49152, v{base+3*i}', f'v_add_u32 v{base+3*i+2}, 98304, v{base+3*i}']
                if i == 0:
                    L.append('s_add_u32 s3, s3, 1')
        elif kind == 'half':
            L += [f'v_lshlrev_b32 v{T+2}, 3, v{vG}', f'v_add_u32 v{T+2}, v{T+2}, v{T}', f'v_lshlrev_b32 v{T+2}, 6, v{T+2}',
                  f'v_and_b32 v{T+3}, 1, v{T+1}', f'v_lshl_add_u32 v{T+2}, v{T+3}, 3, v{T+2}',
                  f'v_lshrrev_b32 v{T+1}, 1, v{T+1}', f's_lshl_b32 s3, s{sFH}, 1', f'v_add_u32 v{T+1}, s3, v{T+1}',
                  f'v_and_b32 v{T+3}, 1, v{vG}', f'v_lshlrev_b32 v{T+3}, 1, v{T+3}', f'v_xor_b32 v{T+1}, v{T+1}, v{T+3}',
                  f'v_lshl_add_u32 v{base}, v{T+1}, 4, v{T+2}',
                  f'v_add_u32 v{base+1}, 49152, v{base}', f'v_add_u32 v{base+2}, 98304, v{base}']
        self._out(L, side)

    def qkv_units(self, st0):
        QA, KA, BB, VA = S1, S1 + 16, S1 + 36, HR
        bufs = [(212, 216, 220, 168), (176, 180, 184, 188)]
        hb = (4, 8)
        units = []
        for s in range(18):
            j, sl = divmod(s, 2)
            st = st0 + j
            Aq, Ak, Ab, Av = bufs[s % 2]
            Hf = hb[s % 2]
            b, off = lds_base_sel(slot_off(st) + sl * 12288)
            reads = []
            for reg, seg in ((Aq, 0), (Ak, 1), (Av, 2)):
                for e in range(2):
                    reads.append(f'ds_read_b64_tr_b16 {vr(reg + e*2, 2)}, v{vTRQ[b]} offset:{off + seg*4096 + e*512}')
            for e in range(2):
                reads.append(f'ds_read_b64_tr_b16 {vr(Ab + e*2, 2)}, v{vTRB[b]} offset:{off + e*512}')
            reads.append(f'ds_read_b128 {vr(Hf)}, v{vX0+2+(s&1)} offset:{s*1024}')
            def B(kt):
                return vr(Hf) if kt == 0 else breg(s, kt - 1)
            m = []
            def c(r): return '0' if s == 0 else vr(r)
            for tt in range(4):
                m.append(f'v_mfma_f32_16x16x32_bf16 {vr(QA+4*tt)}, {vr(Aq)}, {B(tt+1)}, {c(QA+4*tt)}')
            for kt in (1, 2, 3, 4, 0):
                m.append(f'v_mfma_f32_16x16x32_bf16 {vr(KA+4*kt)}, {vr(Ak)}, {B(kt)}, {c(KA+4*kt)}')
            for kt in (1, 2, 3, 4, 0):
                m.append(f'v_mfma_f32_16x16x32_bf16 {vr(VA+4*kt)}, {B(kt)}, {vr(Av)}, {c(VA+4*kt)}')
            for kt in (1, 2, 3, 4, 0):
                m.append(f'v_mfma_f32_16x16x32_bf16 {vr(BB+4*kt)}, {vr(Ab)}, {B(kt)}, {c(BB+4*kt)}')
            units.append(dict(reads=reads, mfma=m, stage=st, last=(sl == 1), read_start=(9 if s == 17 else 0),
                              need=[r for x in (Aq, Ak) for r in range(x, x + 4)]))
        return units

    def ffn_units(self, p, st0, accset):
        units = []
        if p < 4:
            for j in range(6):
                st = st0 + j
                for sl in range(3):
                    s = j * 3 + sl
                    for i in range(2):
                        buf = len(units) % 2
                        reads = []
                        for m in range(2):
                            b, off = lds_base_sel(slot_off(st) + m * 12288 + sl * 4096)
                            for e in range(2):
                                reads.append(f'ds_read_b64_tr_b16 {vr(AF + buf*8 + m*4 + e*2, 2)}, v{vTR + 3*i + b} offset:{off + e*512}')
                        mf = []
                        for m in range(2):
                            for tt in range(4):
                                a = accset + (i * 2 + m) * 16 + tt * 4
                                c = '0' if s == 0 else vr(a)
                                mf.append(f'v_mfma_f32_16x16x32_bf16 {vr(a)}, {vr(AF + buf*8 + m*4)}, {breg(s,tt)}, {c}')
                        units.append(dict(reads=reads, mfma=mf, stage=st, last=(sl == 2 and i == 1)))
        else:
            for j in range(3):
                st = st0 + j
                for sl in range(6):
                    s = j * 6 + sl
                    buf = len(units) % 2
                    reads = []
                    for m in range(2):
                        b, off = lds_base_sel(slot_off(st) + m * 12288 + sl * 2048)
                        for e in range(2):
                            reads.append(f'ds_read_b64_tr_b16 {vr(AF + buf*8 + m*4 + e*2, 2)}, v{self.vTRH + b} offset:{off + e*256}')
                    mf = []
                    for m in range(2):
                        for tt in range(4):
                            a = accset + m * 16 + tt * 4
                            c = '0' if s == 0 else vr(a)
                            mf.append(f'v_mfma_f32_16x16x32_bf16 {vr(a)}, {vr(AF + buf*8 + m*4)}, {breg(s,tt)}, {c}')
                    units.append(dict(reads=reads, mfma=mf, stage=st, last=(sl == 5)))
        return units

    def p2_units(self, panel, st0, accset):
        units = []
        for ps in range(11):
            half = 0 if ps < 6 else 1
            st = st0 + half
            kl = ps if ps < 6 else ps - 6
            buf = (panel * 11 + ps) % 2
            reads = []
            for i in range(2):
                b, off = lds_base_sel(slot_off(st) + kl * 4096)
                for e in range(2):
                    reads.append(f'ds_read_b64_tr_b16 {vr(AF + buf*8 + i*4 + e*2, 2)}, v{vTR + 3*i + b} offset:{off + e*2048}')
            mf = []
            for i in range(2):
                for tt in range(4):
                    a = accset + i * 16 + tt * 4
                    c = '0' if ps == 0 else vr(a)
                    bi = (ps * 4 + tt) * 4
                    mf.append(f'v_mfma_f32_16x16x32_bf16 {vr(a)}, {vr(AF + buf*8 + i*4)}, a[{bi}:{bi+3}], {c}')
            units.append(dict(reads=reads, mfma=mf, stage=st, last=(ps == 5 or ps == 10)))
        return units

    def silu_stream(self, accset, ntile, dests, sd=None):
        sd = sd or Side('silu')
        items = []
        for i in range(ntile):
            for tt in range(4):
                for r in range(4):
                    g = accset + (i * 2) * 16 + tt * 4 + r
                    u = accset + (i * 2 + 1) * 16 + tt * 4 + r
                    items.append((g, u, tt, i, r))
        nT = 8
        for q in range(0, len(items), 4):
            grp = items[q:q + 4]
            ts = [vTMP + ((q + k) % nT) for k in range(4)]
            for k, (g, u, tt, i, r) in enumerate(grp):
                sd.add(f'v_mul_f32 v{ts[k]}, v{g}, v{vC1+tt}')
            for k, (g, u, tt, i, r) in enumerate(grp):
                sd.add(f'v_exp_f32 v{ts[k]}, v{ts[k]}')
                sd.add(f'v_mul_f32 v{u}, v{g}, v{u}')
            for k, (g, u, tt, i, r) in enumerate(grp):
                sd.add(f'v_fma_f32 v{ts[k]}, v{ts[k]}, v{vC2+tt}, v{vC2+tt}')
            for k, (g, u, tt, i, r) in enumerate(grp):
                sd.add(f'v_rcp_f32 v{ts[k]}, v{ts[k]}')
            for k, (g, u, tt, i, r) in enumerate(grp):
                sd.add(f'v_mul_f32 v{u}, v{u}, v{ts[k]}')
            g, u, tt, i, r = grp[0]
            d = dests[i][tt]
            sd.add(f'v_cvt_pk_bf16_f32 v{d}, v{u}, v{u+1}')
            sd.add(f'v_cvt_pk_bf16_f32 v{d+1}, v{u+2}, v{u+3}')
        return sd

    def run_units(self, units, nxt_reads, sides, dma_for_stage, hooks=None):
        E = self.E
        hooks = hooks or {}
        dma = Side('dma')
        cur_stage = None
        n_in_stage = 0
        for ui, u in enumerate(units):
            if u['stage'] != cur_stage:
                cur_stage = u['stage']
                drain(E, [dma])
                dma = dma_for_stage(cur_stage) or Side()
                stage_units = [x for x in units if x['stage'] == cur_stage]
                nload_tot = sum(1 for x in dma.q if not isinstance(x, list) and x.kind == 'dma')
                nitems_tot = len(dma.q)
                k_in_stage = 0
            k_in_stage += 1
            nr = list(units[ui + 1]['reads'] if ui + 1 < len(units) else nxt_reads)
            if u['last']:
                E.wait_lgkm(0)
                E.wait_vm_tag(('st', cur_stage + 1))
                if ('prebar', ui) in hooks: hooks[('prebar', ui)]()
                E.barrier()
            if ui in hooks: hooks[ui]()
            target_left = nitems_tot - (nitems_tot * k_in_stage) // len(stage_units)
            mf = u['mfma']
            need = u.get('need')
            if need is None:
                need = list(range(AF + (0 if f'v[{AF}:{AF+3}]' in mf[0] else 8), AF + (8 if f'v[{AF}:{AF+3}]' in mf[0] else 16)))
            E.wait_regs([('v', r) for r in need])
            rs = u.get('read_start', 0)
            for i, m in enumerate(mf):
                E.emit(m)
                budget = 8
                if nr and i >= rs:
                    E.emit(nr.pop(0))
                    budget -= 4
                    if len(nr) > len(mf) - i - 1 and nr:
                        E.emit(nr.pop(0)); budget -= 4
                elif len(dma.q) > target_left and (not nr):
                    while len(dma.q) > target_left and budget > 0:
                        ins = dma.q.pop(0)
                        if isinstance(ins, list):
                            for y in ins: E.emit(y)
                            budget -= 4 * len(ins)
                        else:
                            E.emit(ins)
                            budget -= 8 if ins.kind == 'dma' else 4
                if budget > 0:
                    fill_gap(E, sides, budget)
            while nr:
                E.emit(nr.pop(0))
            if ('post', ui) in hooks: hooks[('post', ui)]()
        drain(E, [dma])

    def attention_setup(self, sd):
        A = sd.add
        RQ, BA, BBI = 4, 8, 12
        T0, T1 = vX0, vX0 + 1
        LE = ['s[88:89]', 's[90:91]', 's[92:93]', 's[100:101]']
        ODD = 's[98:99]'
        A(f'v_lshlrev_b32 v{T0}, 2, v{vG}', f'v_and_b32 v{T1}, 1, v{vT16}', f'v_cmp_eq_u32 {ODD}, 1, v{T1}')
        for r in range(4):
            A(f'v_add_u32 v{T1}, {r}, v{T0}', f'v_cmp_le_u32 {LE[r]}, v{T1}, v{vT16}')
        for tt in range(4):
            A(f'v_mul_f32 v{RQ+tt}, {hex(f2u(-SCALE))}, v{vC1+tt}')
        A(f'v_mov_b32 v{T1}, {hex(f2u(-1e30))}')
        for r in range(4):
            if r % 2 == 0:
                sd.group(f's_andn2_b64 vcc, {LE[r]}, {ODD}', f'v_cndmask_b32 v{BBI+r}, v{T1}, 0, vcc')
                sd.group(f's_nor_b64 vcc, {LE[r]}, {ODD}', f'v_cndmask_b32 v{BA+r}, v{T1}, 0, vcc')
            else:
                sd.group(f's_and_b64 vcc, {LE[r]}, {ODD}', f'v_cndmask_b32 v{BBI+r}, v{T1}, 0, vcc')
                sd.group(f's_andn2_b64 vcc, {ODD}, {LE[r]}', f'v_cndmask_b32 v{BA+r}, v{T1}, 0, vcc')

    def attention_streams(self):
        QA, KA, BB, VA = S1, S1 + 16, S1 + 36, HR
        VP = HR + 20
        RK = S1 + 56
        RQ, BA, BBI = 4, 8, 12
        T0, T1 = vX0, vX0 + 1
        sd = Side('attn'); A = sd.add
        self.attention_setup(sd)
        A(f's_lshl_b32 s3, s{sTG}, 8', f's_add_u32 s3, s3, {MISC}', f'v_lshl_add_u32 v{T0}, v{vT16}, 2, s3')
        for kt in range(5):
            A(f'ds_read_b32 v{RK+kt}, v{T0} offset:{RSTD + kt*64}')
        sd.group(f'v_cmp_eq_u32 vcc, 0, v{vG}')
        for tt in range(4):
            q = QA + 4 * tt; b = BB + 4 * (tt + 1)
            A(f'v_cndmask_b32 v{T1}, 0, v{RQ+tt}, vcc',
              f'v_mul_f32 v{q}, v{q}, v{RQ+tt}', f'v_mul_f32 v{q+1}, v{q+1}, v{RQ+tt}',
              f'v_mul_f32 v{q+2}, v{q+2}, v{RQ+tt}', f'v_mul_f32 v{q+3}, v{q+3}, v{RQ+tt}',
              f'v_mul_f32 v{vX0+2}, v{b+2}, v{T1}', f'v_mul_f32 v{vX0+3}, v{b+3}, v{T1}',
              f'v_cvt_pk_bf16_f32 v{q}, v{q}, v{q+1}', f'v_cvt_pk_bf16_f32 v{q+1}, v{q+2}, v{q+3}',
              f'v_cvt_pk_bf16_f32 v{q+2}, v{vX0+2}, v{vX0+3}', f'v_mov_b32 v{q+3}, 0')
        for kt in range(5):
            k = KA + 4 * kt; b = BB + 4 * kt
            A(f'v_mul_f32 v{k}, v{k}, v{RK+kt}', f'v_mul_f32 v{k+1}, v{k+1}, v{RK+kt}',
              f'v_mul_f32 v{k+2}, v{k+2}, v{RK+kt}', f'v_mul_f32 v{k+3}, v{k+3}, v{RK+kt}',
              f'v_mul_f32 v{b+2}, v{b+2}, v{RK+kt}', f'v_mul_f32 v{b+3}, v{b+3}, v{RK+kt}',
              f'v_cvt_pk_bf16_f32 v{k}, v{k}, v{k+1}', f'v_cvt_pk_bf16_f32 v{k+1}, v{k+2}, v{k+3}',
              f'v_cvt_pk_bf16_f32 v{b+2}, v{b+2}, v{b+3}',
              f'v_mov_b32 v{k+2}, 0', f'v_mov_b32 v{b+3}, v{b+2}', f'v_mov_b32 v{k+3}, 0',
              f'v_permlane16_swap_b32 v{b+3}, v{k+2}')
        A(f's_mul_i32 s3, s{sW}, 640', f's_add_u32 s3, s3, {MISC + VXB}',
          f'v_lshlrev_b32 v{T0}, 1, v{vT16}', f'v_mov_b32 v{T1}, 340')
        sd.group(f'v_cmp_eq_u32 vcc, 2, v{vG}', 's_nop 1', f'v_cndmask_b32 v{T0}, v{T1}, v{T0}, vcc')
        A(f'v_add_u32 v{T0}, s3, v{T0}')
        for kt in range(5):
            b = BB + 4 * kt
            A(f'ds_write_b16 v{T0}, v{b+2} offset:{kt*32}', f'ds_write_b16_d16_hi v{T0}, v{b+2} offset:{160 + kt*32}')
        A(f'v_mul_u32_u24 v{T1}, 160, v{vT16}', f'v_lshl_add_u32 v{T1}, v{vG}, 3, v{T1}', f'v_add_u32 v{T1}, s3, v{T1}',
          f'v_mov_b32 v{T0}, {MISC + ZERO}')
        sd.group(f'v_cmp_gt_u32 vcc, 2, v{vT16}', 's_nop 1', f'v_cndmask_b32 v{T1}, v{T0}, v{T1}, vcc')
        A(f's_lshl_b32 s3, s{sTG}, 8', f's_add_u32 s3, s3, {MISC}', f'v_lshl_add_u32 v{T0}, v{vG}, 4, s3')
        for kt in range(5):
            v = VA + 4 * kt
            rv = RK + (kt % 2) * 4
            A(f'ds_read_b128 {vr(rv)}, v{T0} offset:{RSTD + kt*64}')
            if kt >= 1:
                v0 = VA + 4 * (kt - 1); r0 = RK + ((kt - 1) % 2) * 4
                for r in range(4): A(f'v_mul_f32 v{v0+r}, v{v0+r}, v{r0+r}')
                A(f'v_cvt_pk_bf16_f32 v{VP+2*(kt-1)}, v{v0}, v{v0+1}', f'v_cvt_pk_bf16_f32 v{VP+2*(kt-1)+1}, v{v0+2}, v{v0+3}')
        v0 = VA + 16; r0 = RK
        for r in range(4): A(f'v_mul_f32 v{v0+r}, v{v0+r}, v{r0+r}')
        A(f'v_cvt_pk_bf16_f32 v{VP+8}, v{v0}, v{v0+1}', f'v_cvt_pk_bf16_f32 v{VP+9}, v{v0+2}, v{v0+3}')
        VXF = VA
        for kt in range(5):
            A(f'ds_read_b64 {vr(VXF+2*kt, 2)}, v{T1} offset:{kt*32}')
        BA0C = VA + 12
        A(f's_lshl_b32 s3, s{sTG}, 6', f's_add_u32 s3, s3, s{sT0}', f'v_mov_b32 v{T1}, {hex(f2u(-1e30))}')
        sd.group(f's_cmp_eq_u32 s3, 0', f's_cselect_b64 vcc, -1, 0')
        for r in range(4):
            A(f'v_cndmask_b32 v{BA0C+r}, v{BA+r}, v{T1}, vcc')
        A(f's_lshl_b32 s3, s{sW}, 12', f's_add_u32 s3, s3, {EXO}', f'v_lshl_add_u32 v{T0}, v{vLANE}, 4, s3')
        def soft(tts, SA, PF, M):
            s2 = Side('soft'); B = s2.add
            SB = SA + 4; Mx, L = M + 1, M + 2
            for tt in tts:
                kt = tt + 1
                ba = BA0C if tt == 0 else BA
                B(f'v_mfma_f32_16x16x32_bf16 {vr(SA)}, {vr(KA+4*(kt-1))}, {vr(QA+4*tt)}, {vr(ba)}',
                  f'v_mfma_f32_16x16x32_bf16 {vr(SB)}, {vr(KA+4*kt)}, {vr(QA+4*tt)}, {vr(BBI)}')
                B(f'v_max3_f32 v{M}, v{SA}, v{SA+1}, v{SA+2}', f'v_max3_f32 v{M}, v{M}, v{SA+3}, v{SB}',
                  f'v_max3_f32 v{M}, v{M}, v{SB+1}, v{SB+2}', f'v_max_f32 v{M}, v{M}, v{SB+3}')
                B(*self.xlane(M, Mx, 'v_max_f32'))
                for r in range(8): B(f'v_sub_f32 v{SA+r}, v{SA+r}, v{M}')
                for r in range(8): B(f'v_exp_f32 v{SA+r}, v{SA+r}')
                for r in range(4): B(f'v_cvt_pk_bf16_f32 v{PF+r}, v{SA+2*r}, v{SA+2*r+1}')
                B(f'v_add_f32 v{L}, v{SA}, v{SA+1}')
                for r in range(2, 8): B(f'v_add_f32 v{L}, v{L}, v{SA+r}')
                B(f'v_mfma_f32_16x16x32_bf16 {vr(SA)}, {vr(VP+2*(kt-1))}, {vr(PF)}, 0',
                  f'v_mfma_f32_16x16x32_bf16 {vr(SB)}, {vr(VXF+2*(kt-1))}, {vr(PF)}, 0')
                B(*self.xlane(L, Mx))
                B(f'v_rcp_f32 v{L}, v{L}')
                for r in range(8): B(f'v_mul_f32 v{SA+r}, v{SA+r}, v{L}')
                for r in range(4): B(f'v_cvt_pk_bf16_f32 v{PF+r}, v{SA+2*r}, v{SA+2*r+1}')
                B(f'ds_write_b128 v{T0}, {vr(PF)} offset:{tt*1024}')
            return s2
        sa = soft((0, 1), BB, BB + 8, BB + 12)
        sb = soft((2, 3), BB + 16, VA + 16, RK + 4)
        return sd, sa, sb

    def store_stream(self, panel, accset):
        sd = Side('store')
        for tt in range(4):
            a0 = accset + tt * 4
            a1 = accset + 16 + tt * 4
            sd.add(f'v_cvt_pk_bf16_f32 v{a0}, v{a0}, v{a0+1}', f'v_cvt_pk_bf16_f32 v{a0+1}, v{a0+2}, v{a0+3}',
                   f'v_cvt_pk_bf16_f32 v{a0+2}, v{a1}, v{a1+1}', f'v_cvt_pk_bf16_f32 v{a0+3}, v{a1+2}, v{a1+3}')
            sd.add(f's_add_u32 s77, s{sPB}, {panel*16*16384 + tt*2*16384}')
            sd.add(f'buffer_store_dwordx4 {vr(a0)}, v11, {srd(SW)}, s77 offen')
        return sd

    def interleave_drain(self, sa, sb):
        E = self.E
        while sa.q or sb.q:
            fill_gap(E, [sa, sb], 64)
            for s_ in (sa, sb):
                if s_.q:
                    x = s_.q.pop(0)
                    if isinstance(x, list):
                        for y in x: E.emit(y)
                    else: E.emit(x)

    def main_kernel(self):
        E = self.E
        self.prologue()
        self.stamp(2)
        for j in (2, 3, 4):
            self.dma_ffn(j, 0, j)
        if self.dbg.get('ln'):
            regs = [f'a{i}' for i in range(256)] + list(range(XV, XV + 32)) + list(range(vC1, vC1 + 8))
            self.dump_regs(regs, 0)
        def ffn_stage(st):
            if st < 6: return (0, st)
            if st < 33: return (1 + (st - 15) // 6, (st - 15) % 6)
            return (4, st - 33)
        self.vTRH = vTR
        def dma_for_stage(st):
            t = st + 4
            sd = Side('dma')
            if st == 0:
                return sd
            if 6 <= t <= 14:
                if t == 6: self.qkv_dma_setup(sd, 4)
                self.dma_qkv(t, t - 6, sd)
            elif t <= 35:
                if t == 33: self.ffn_dma_setup_half(sd)
                p, j = ffn_stage(t)
                self.dma_ffn(t, p, j, sd)
            elif t <= 37:
                if t == 36: self.p2_setup(sd)
                self.dma_p2(t, sd)
            return sd
        E.wait_vm_tag(('st', 0))
        E.barrier()
        p0 = self.ffn_units(0, 0, S0)
        for x in p0[0]['reads']:
            E.emit(x)
        qu = self.qkv_units(6)
        s0 = Side('p0side')
        self.tr_setup('qkv', None, s0)
        s0.add(f's_mov_b32 s3, {HALO0}')
        s0.group(f's_cmp_eq_u32 s{sTG}, 0', f's_cselect_b32 s3, s3, {HALO1}')
        s0.add(f'v_add_u32 v{vX0+2}, s3, v221', f'v_add_u32 v{vX0+3}, s3, v222')
        self.pf_qkv(s0, 8, 98, 15)
        self.run_units(p0, qu[0]['reads'], [s0], dma_for_stage, {30: lambda: drain(E, [s0])})
        drain(E, [s0])
        self.stamp(3)
        d0 = [[S0 + (i * 2 + 1) * 16 + tt * 4 for tt in range(4)] for i in range(2)]
        sl = self.silu_stream(S0, 2, d0)
        sl.add(f's_lshl_b32 s3, s{sTG}, 13', f's_lshl_b32 s59, s{sFH}, 3', f's_add_u32 s3, s3, s59', f's_add_u32 s3, s3, {EXP0}',
               f'v_lshl_add_u32 v15, v{vLANE}, 4, s3')
        def h0_writes():
            drain(E, [sl])
            for i in range(2):
                for tt in range(4):
                    E.emit(f'ds_write_b64 v15, {vr(d0[i][tt], 2)} offset:{(i*4+tt)*1024}')
        p1 = self.ffn_units(1, 15, S0)
        self.run_units(qu, p1[0]['reads'], [sl], dma_for_stage, {17: h0_writes})
        if self.dbg.get('qkv'):
            regs = list(range(S1, S1 + 56)) + list(range(HR, HR + 20))
            self.dump_regs(regs, 0)
        self.stamp(4)
        att, sa, sb = self.attention_streams()
        class LazySides(list):
            def __iter__(self2):
                if att.q: return iter([att])
                return iter([sa, sb])
        p2 = self.ffn_units(2, 21, S1)
        self.run_units(p1, p2[0]['reads'], LazySides(), dma_for_stage)
        drain(E, [att])
        self.interleave_drain(sa, sb)
        self.stamp(5)
        d1 = [[HR + (i * 4 + tt) * 2 for tt in range(4)] for i in range(2)]
        sl = self.silu_stream(S0, 2, d1)
        pfc = Side('pfc'); self.pf_down(pfc, 8, 98)
        p3 = self.ffn_units(3, 27, S0)
        self.run_units(p2, p3[0]['reads'], [pfc, sl], dma_for_stage)
        drain(E, [sl, pfc])
        self.stamp(10)
        d2 = [[HR + 16 + (i * 4 + tt) * 2 for tt in range(4)] for i in range(2)]
        self.vTRH = 4
        sl = Side()
        self.tr_setup('half', 4, sl)
        self.silu_stream(S1, 2, d2, sl)
        ph = self.ffn_units(4, 33, S1)
        self.run_units(p3, ph[0]['reads'], [sl], dma_for_stage)
        drain(E, [sl])
        self.stamp(11)
        d3 = [[S1 + 32 + (i * 4 + tt) * 2 for tt in range(4)] for i in range(2)]
        sl = Side()
        self.tr_setup('p2', vTR, sl)
        sl.add(f's_mul_i32 s3, s{sTG}, 24576', f's_add_u32 s3, s3, {3*SLOT}', f'v_lshl_add_u32 v15, v{vLANE}, 4, s3',
               f's_lshl_b32 s59, s{sFH}, 3', f'v_add_u32 v12, s59, v15',
               f's_lshl_b32 s3, s{sTG}, 12', f'v_lshl_add_u32 v7, v{vLANE}, 4, s3', f'v_add_u32 v13, s59, v7',
               f's_lshl_b32 s3, s{sTG}, 13', f's_add_u32 s3, s3, {NONRING}', f'v_lshl_add_u32 v14, v{vLANE}, 4, s3')
        self.silu_stream(S0, 2, d3, sl)
        pu = [self.p2_units(pn, 36 + 2 * pn, HR if pn == 0 else (S0 if pn % 2 == 1 else S1)) for pn in range(9)]
        def rd_frag(ps, tt):
            k = KORDER[ps]
            bi = (ps * 4 + tt) * 4
            if k < 2: a, off = 14, 16384 + (k * 4 + tt) * 1024
            elif k < 8: a, off = 15, ((k - 2) * 4 + tt) * 1024
            elif k == 8: a, off = 7, tt * 1024
            else: a, off = 14, ((k - 9) * 4 + tt) * 1024
            return f'ds_read_b128 a[{bi}:{bi+3}], v{a} offset:{off}'
        early = Side('early')
        for ps in range(4):
            for tt in range(4): early.add(rd_frag(ps, tt))
        wr12 = Side('wr12')
        for pi, d in enumerate((d1, d2)):
            for i in range(2):
                for tt in range(4):
                    wr12.add(f'ds_write_b64 v12, {vr(d[i][tt], 2)} offset:{((pi*2+i)*4+tt)*1024}')
        act = [sl]
        class Lazy2(list):
            def __iter__(self2): return iter(list(act))
        hooks = {6: lambda: act.insert(0, early), 12: lambda: act.insert(0, wr12),
                 ('prebar', 17): lambda: (drain(E, [wr12]), E.wait_lgkm(0))}
        self.run_units(ph, pu[0][0]['reads'], Lazy2(), dma_for_stage, hooks)
        drain(E, [early])
        self.stamp(6)
        mid = Side('mid')
        for ps in range(4, 8):
            for tt in range(4): mid.add(rd_frag(ps, tt))
        dh = [[S1 + 48 + tt * 2 for tt in range(4)]]
        for i in range(2):
            for tt in range(4):
                sl.add(f'ds_write_b64 v12, {vr(d3[i][tt], 2)} offset:{((4+i)*4+tt)*1024}')
        self.silu_stream(S1, 1, dh, sl)
        for tt in range(4):
            sl.add(f'ds_write_b64 v13, {vr(dh[0][tt], 2)} offset:{tt*1024}')
        if self.dbg.get('h'):
            drain(E, [mid, sl]); E.wait_lgkm(0); E.barrier()
            for ps in range(8, 11):
                for tt in range(4): E.emit(rd_frag(ps, tt))
            self.dump_regs([f'a{i}' for i in range(176)], 0)
            E.barrier()
        self.p2_tail(pu, mid, sl, rd_frag)
        E.label('L_main_end')
        E.raw('s_endpgm')

    def p2_tail(self, pu, mid, sl, rd_frag):
        E = self.E
        E.emits(f'''s_mul_i32 s{sPB}, s{sTB}, {9*16*16384}
        s_lshl_b32 s3, s{sTG}, 3
        s_add_u32 s3, s3, s{sFH}
        s_lshl_b32 s3, s3, 14
        s_add_u32 s{sPB}, s{sPB}, s3
        s_lshl_b32 s3, s{sFC}, 10
        s_add_u32 s{sPB}, s{sPB}, s3
        v_lshlrev_b32 v11, 4, v{vLANE}''')
        late = Side('late')
        for ps in range(8, 11):
            for tt in range(4): late.add(rd_frag(ps, tt))
        act = [mid, sl]
        class Lazy3(list):
            def __iter__(self2): return iter(list(act))
        def dma_p2_for_stage(st):
            sd = Side('dma')
            for t in range(38, 54):
                if P2ISSUE[t] == st: self.dma_p2(t, sd)
            return sd
        def xbar():
            drain(E, [mid, sl]); E.wait_lgkm(0); E.barrier()
            act[:] = [late]
        accs = lambda pn: HR if pn == 0 else (S0 if pn % 2 == 1 else S1)
        st_side = None
        for pn in range(9):
            nxt = pu[pn + 1][0]['reads'] if pn < 8 else []
            if pn == 0:
                self.run_units(pu[0], nxt, Lazy3(), dma_p2_for_stage, {3: lambda: drain(E, [mid]), 7: xbar, 8: lambda: drain(E, [late])})
                drain(E, [late])
                self.stamp(7)
            else:
                self.run_units(pu[pn], nxt, [st_side], dma_p2_for_stage)
                drain(E, [st_side])
            st_side = self.store_stream(pn, accs(pn))
        self.stamp(8)
        drain(E, [st_side])
        E.wait_vm(0)
        self.stamp(9)
        self.stamp_store()


def reduce_kernel():
    E = Emitter()
    E.emits('''s_cmp_ge_u32 s2, 576
    s_cbranch_scc1 L_red_end
    s_load_dwordx2 s[4:5], s[0:1], 0
    s_load_dwordx2 s[6:7], s[0:1], 56
    s_load_dwordx2 s[36:37], s[0:1], 72
    v_lshrrev_b32 v4, 6, v0
    v_and_b32 v1, 63, v0
    v_and_b32 v2, 15, v0
    v_readfirstlane_b32 s20, v4
    v_bfe_u32 v3, v0, 4, 2''')
    E.raw('s_waitcnt lgkmcnt(0)'); E.ws += 1
    for (r, p, sz) in ((8, 4, 2359296), (12, 6, 2359296), (16, 36, 0x10000000)):
        E.emits(f'''s_mov_b32 s{r}, s{p}
        s_mov_b32 s{r+1}, s{p+1}
        s_mov_b32 s{r+2}, {sz}
        s_mov_b32 s{r+3}, 0x20000''')
    E.emits('''s_lshl_b32 s21, s2, 2
    s_add_u32 s21, s21, s20
    s_lshl_b32 s22, s21, 14
    v_lshlrev_b32 v5, 4, v1''')
    for f in range(16):
        E.emit(f's_add_u32 s23, s22, {(f//4)*4096}')
        E.emit(f'buffer_load_dwordx4 v[{16+4*f}:{19+4*f}], v5, s[16:19], s23 offen offset:{(f%4)*1024}')
    E.emits('''s_mul_hi_u32 s24, s21, 0x1c71c72
    s_mul_i32 s25, s24, 144
    s_sub_u32 s25, s21, s25
    s_lshr_b32 s26, s25, 4
    s_and_b32 s27, s25, 15
    s_lshr_b32 s28, s27, 1
    s_and_b32 s29, s27, 1
    s_lshl_b32 s30, s24, 7
    s_lshl_b32 s31, s28, 4
    s_add_u32 s30, s30, s31
    v_add_u32 v6, s30, v2
    s_movk_i32 s31, 1152
    v_mul_lo_u32 v6, v6, s31
    s_lshl_b32 s32, s26, 7
    s_lshl_b32 s33, s29, 6
    s_add_u32 s32, s32, s33
    v_lshl_add_u32 v6, v3, 3, v6
    v_add_u32 v6, s32, v6
    buffer_load_dwordx2 v[8:9], v6, s[8:11], 0 offen
    buffer_load_dwordx2 v[10:11], v6, s[8:11], 0 offen offset:32
    s_mov_b32 s34, 0xffff0000''')
    A = 80
    for d in range(4):
        E.emit(f'v_lshlrev_b32 v{A+2*d}, 16, v{8+d}')
        E.emit(f'v_and_b32 v{A+2*d+1}, s34, v{8+d}')
    for f in range(16):
        for d in range(4):
            x = 16 + 4 * f + d
            E.emit(f'v_lshlrev_b32 v{90+2*d}, 16, v{x}')
            E.emit(f'v_and_b32 v{91+2*d}, s34, v{x}')
        for d in range(4):
            E.emit(f'v_pk_add_f32 v[{A+2*d}:{A+2*d+1}], v[{A+2*d}:{A+2*d+1}], v[{90+2*d}:{91+2*d}]')
    for d in range(4):
        E.emit(f'v_cvt_pk_bf16_f32 v{8+d}, v{A+2*d}, v{A+2*d+1}')
    E.emits('''buffer_store_dwordx2 v[8:9], v6, s[12:15], 0 offen
    buffer_store_dwordx2 v[10:11], v6, s[12:15], 0 offen offset:32''')
    E.wait_vm(0)
    E.label('L_red_end')
    E.raw('s_endpgm')
    return E


HEADER = '''; Fused LayerNorm + sliding dilated attention + SwiGLU FFN for gfx950 (generated by own script)
; @launch kernel=fused_main_kernel grid=(256,1,1) block=(256,1,1) lds=163840
; @launch kernel=reduce_kernel grid=(576,1,1) block=(256,1,1) lds=0
.amdgcn_target "amdgcn-amd-amdhsa--gfx950"
.text
'''


def kdesc(name, vgpr, accum, sgpr=102):
    return f'''.amdhsa_kernel {name}
  .amdhsa_next_free_vgpr {vgpr}
  .amdhsa_next_free_sgpr {sgpr}
  .amdhsa_accum_offset {accum}
  .amdhsa_group_segment_fixed_size 0
  .amdhsa_kernarg_size 80
  .amdhsa_user_sgpr_count 2
  .amdhsa_user_sgpr_kernarg_segment_ptr 1
  .amdhsa_system_sgpr_workgroup_id_x 1
.end_amdhsa_kernel
'''


def build(dbg=None):
    g = Gen(dbg)
    g.main_kernel()
    r = reduce_kernel()
    s = HEADER
    s += '.globl fused_main_kernel\n.p2align 8\n.type fused_main_kernel,@function\nfused_main_kernel:\n' + g.E.text()
    s += '.globl reduce_kernel\n.p2align 8\n.type reduce_kernel,@function\nreduce_kernel:\n' + r.text()
    s += '.section .rodata,"a"\n.p2align 6\n' + kdesc('fused_main_kernel', 512, 256) + '.p2align 6\n' + kdesc('reduce_kernel', 98, 100, 48)
    sys.stderr.write(f'main: {g.E.n} instrs, nops {g.E.nops}, est time {g.E.time}, {g.E.stats}\n')
    return s


if __name__ == '__main__':
    out = sys.argv[1] if len(sys.argv) > 1 else 'k.s'
    dbg = {a: True for a in sys.argv[2:]}
    open(out, 'w').write(build(dbg))
```

```python
import sys, struct
from asmlib import *

SLOT = 24576
NSLOT = 5
NONRING = SLOT * NSLOT
HALO0 = NONRING
HALO1 = NONRING + 18432
MISC = NONRING + 36864
RSTD = 0
C2A = 576
ZERO = 1280
VXB = 1536
XA = 2 * SLOT
EXO = NONRING
EXP0 = NONRING + 16384
LOG2E = 1.4426950408889634
SCALE = 18 ** -0.5

def f2u(x):
    return struct.unpack('<I', struct.pack('<f', x))[0]

SX, SQ, SO, SF, SD, SW = 8, 12, 16, 20, 24, 28
def srd(n): return f's[{n}:{n+3}]'
sW, sTG, sFH, sTB, sFC, sT0 = 50, 51, 52, 53, 54, 55
sSEL_LO, sSEL_HI = 56, 57
sSOFF, sLW, sFB, sFHB, sPB = 72, 73, 74, 75, 76
sK2 = 60
SOUT = 44
sNONCE, sFLG = 36, 37
CTRL = 0x2800000

vLANE, vT16, vG = 1, 2, 3
XV = 16
S0, S1 = 48, 112
AF = 176
HR = 192
vDMA = 224
vTR = 230
vC1 = 236
vC2 = 240
vTMP = 244
vX0 = 252
vQD = 175
vTRQ = (12, 13, 14)
vTRB = (172, 173, 174)

KORDER = [0, 1, 9, 10, 2, 3, 4, 5, 6, 7, 8]

def breg(s, tt):
    idx = (s * 4 + tt) * 4
    if idx < 256:
        return f'a[{idx}:{idx+3}]'
    b = XV + idx - 256
    return f'v[{b}:{b+3}]'

def vr(b, n=4):
    return f'v[{b}:{b+n-1}]'

P2SLOT = {36: 1*SLOT, 37: 2*SLOT}
P2ISSUE = {}
def _p2plan():
    free = {NONRING: 35, 1*SLOT: 36, 2*SLOT: 37, 3*SLOT: 37, 4*SLOT: 37, 0: 37}
    order = [NONRING, 1*SLOT, 2*SLOT, 3*SLOT, 4*SLOT, 0]
    load = {}
    for t in range(38, 54):
        sl = min(order, key=lambda x: (free[x], order.index(x)))
        iss = max(free[sl] + 1, t - 4)
        while load.get(iss, 0) >= 2: iss += 1
        assert iss <= t - 2 or (t == 38 and iss == 36), (t, iss)
        load[iss] = load.get(iss, 0) + 1
        P2SLOT[t] = sl
        P2ISSUE[t] = iss
        free[sl] = t
_p2plan()
def slot_off(st):
    return P2SLOT[st] if st >= 36 else (st % NSLOT) * SLOT

def lds_base_sel(off):
    b = off // 49152
    return b, off - b * 49152


class RawIns(Ins):
    def __init__(self, text):
        self.text = text; self.op = 'raw'; self.rd = []; self.wr = []; self.kind = 'salu'; self.tag = None; self.cost = 4; self.ops = []


class Gen:
    def __init__(self, dbg=None):
        self.E = Emitter()
        self.dbg = dbg or {}

    def xlane(self, a, b, op='v_add_f32'):
        return [f'v_mov_b32 v{b}, v{a}', f'v_permlane16_swap_b32 v{a}, v{b}', f'{op} v{a}, v{a}, v{b}',
                f'v_mov_b32 v{b}, v{a}', f'v_permlane32_swap_b32 v{a}, v{b}', f'{op} v{a}, v{a}, v{b}']

    def dump_regs(self, regs, slot):
        E = self.E
        E.wait_lgkm(0); E.wait_vm(0)
        E.emits(f'''s_lshl_b32 s90, s2, 2
        s_add_u32 s90, s90, s{sW}
        s_lshl_b32 s90, s90, 17
        s_add_u32 s90, s90, 0x4000000
        v_lshlrev_b32 v{vX0+3}, 2, v{vLANE}''')
        for i, r in enumerate(regs):
            rr = r if isinstance(r, str) else f'v{r}'
            E.emit(f's_add_u32 s91, s90, {(slot + i) * 256}')
            E.emit(f'buffer_store_dword {rr}, v{vX0+3}, {srd(SW)}, s91 offen')
        E.wait_vm(0)

    def tstamp(self, i):
        if self.dbg.get('tail'):
            self.dbg['tail_force'] = True
            self.stamp(i)
            self.dbg['tail_force'] = False

    def pstamp(self, i):
        if self.dbg.get('pp'):
            self.dbg['pp_force'] = True
            self.stamp(i)
            self.dbg['pp_force'] = False

    def stamp(self, i, fine=False):
        if not self.dbg.get('ts'):
            return
        if self.dbg.get('pp') and not self.dbg.get('pp_force') and i != 0:
            return
        if self.dbg.get('tail') and not self.dbg.get('tail_force') and i not in (0, 7, 8, 9):
            return
        if self.dbg.get('fine'):
            if not fine and i != 0:
                if i != 9: return
                i = 11
        elif fine:
            return
        E = self.E
        E.raw('s_memtime s[98:99]' if self.dbg.get('cyc') else 's_memrealtime s[98:99]')
        E.raw('s_waitcnt lgkmcnt(0)')
        E.lgkm = []
        E.raw(f's_mov_b32 s{78+i}, s98')
        E.ws += 3

    def stamp_store(self):
        if not self.dbg.get('ts'):
            return
        E = self.E
        E.emits(f'''s_lshl_b32 s90, s2, 2
        s_add_u32 s90, s90, s{sW}
        s_lshl_b32 s90, s90, 6
        s_add_u32 s90, s90, 0x4000000
        v_mov_b32 v4, 0''')
        for i in range(12):
            E.emit(f'v_mov_b32 v5, s{78+i}')
            E.emit(f'buffer_store_dword v5, v4, {srd(SW)}, s90 offen offset:{i*4}')
        E.wait_vm(0)

    def sprinkle_on(self, side, every):
        E = self.E
        self.spr = side; self.spr_every = every; self.spr_cnt = 0
        if not hasattr(E, '_emit0'):
            E._emit0 = E.emit
        gen = self
        def emit(text, tag=None):
            r = E._emit0(text, tag)
            if gen.spr is not None and gen.spr.q:
                gen.spr_cnt += 1
                if gen.spr_cnt >= gen.spr_every:
                    gen.spr_cnt = 0
                    x = gen.spr.q.pop(0)
                    if isinstance(x, list):
                        for y in x: E._emit0(y)
                    else:
                        E._emit0(x)
            return r
        E.emit = emit

    def sprinkle_off(self, drain_rest=True):
        E = self.E
        sp = self.spr
        self.spr = None
        E.emit = E._emit0
        if drain_rest and sp is not None:
            drain(E, [sp])

    def _out(self, lines, side, tag=None):
        for l in lines:
            if isinstance(l, (list, tuple)):
                if side is None:
                    for x in l: self.E.emit(x, tag=tag)
                else:
                    side.group(*l, tag=tag)
            else:
                if side is None: self.E.emit(l, tag=tag)
                else: side.add(l, tag=tag)

    def prologue(self):
        E = self.E
        E.emits('''s_cmp_ge_u32 s2, 256
        s_cbranch_scc1 L_main_end''')
        self.stamp(0)
        if not self.dbg.get('nopf'):
            E.raw('s_getpc_b64 s[96:97]'); E.raw('L_pc0:')
            E.raw('v_lshlrev_b32 v223, 7, v0')
            E.raw('global_load_dword v211, v223, s[96:97]')
            E.ws += 3
            E.vm.append((set(), None))
        E.emits(f'''s_load_dwordx4 s[36:39], s[0:1], 0
        s_load_dwordx2 s[40:41], s[0:1], 16
        s_load_dwordx4 s[44:47], s[0:1], 32
        s_load_dwordx2 s[42:43], s[0:1], 48
        s_load_dwordx2 s[48:49], s[0:1], 72
        s_load_dwordx2 s[58:59], s[0:1], 56
        v_lshrrev_b32 v4, 6, v0
        v_and_b32 v{vLANE}, 63, v0
        v_and_b32 v{vT16}, 15, v0
        v_readfirstlane_b32 s{sW}, v4
        v_bfe_u32 v{vG}, v0, 4, 2
        s_and_b32 s{sFC}, s2, 7
        s_lshl_b32 s{sFC}, s{sFC}, 1
        s_lshr_b32 s3, s2, 3
        s_and_b32 s3, s3, 1
        s_add_u32 s{sFC}, s{sFC}, s3
        s_lshr_b32 s{sTB}, s2, 4
        s_lshl_b32 s{sT0}, s{sTB}, 7
        v_lshrrev_b32 v5, 3, v{vLANE}
        v_and_b32 v6, 7, v{vLANE}
        s_lshr_b32 s{sTG}, s{sW}, 1
        s_and_b32 s{sFH}, s{sW}, 1
        s_lshl_b32 s3, s{sW}, 5
        s_add_u32 s3, s3, s{sT0}
        v_add_u32 v4, s3, v5
        v_mul_u32_u24 v4, 1152, v4
        v_lshl_add_u32 v4, v6, 4, v4
        s_movk_i32 s61, 9216
        s_movk_i32 s62, 18432
        s_movk_i32 s63, 27648
        s_mov_b32 s{sSEL_LO}, 0x00003f80
        s_mov_b32 s{sSEL_HI}, 0x3f800000''')
        E.raw('s_waitcnt lgkmcnt(0)')
        E.ws += 1
        self.stamp(1, True)
        def mk(r, p, sz):
            E.emits(f'''s_mov_b32 s{r}, s{p}
            s_mov_b32 s{r+1}, s{p+1}
            s_mov_b32 s{r+2}, {sz}
            s_mov_b32 s{r+3}, 0x20000''')
        mk(SX, 36, 2359296)
        RX, RH = 48, 192
        def xl(q):
            so = ['0', 's61', 's62', 's63'][q]
            for m in range(9):
                E.emit(f'buffer_load_dwordx4 {vr(RX + (q*9+m)*4)}, v4, {srd(SX)}, {so} offen offset:{m*128}', tag=('x', q))
        xl(0); xl(1)
        vm = Side('vm')
        E.emits(f'''s_lshl_b32 s3, s{sW}, 2
        s_add_u32 s3, s3, s{sT0}
        s_sub_u32 s3, s3, 16
        v_add_u32 v7, s3, v{vG}
        v_mul_i32_i24 v7, 1152, v7
        v_lshl_add_u32 v7, v{vT16}, 4, v7
        v_cmp_gt_u32 vcc, 8, v{vT16}
        v_mov_b32 v9, 0x40000000
        v_cndmask_b32 v8, v9, v7, vcc''')
        E.emit('v_mov_b32 v223, v8')
        for i in range(4):
            vm.add(f'buffer_load_dwordx4 {vr(RH + 4*i)}, v7, {srd(SX)}, 0 offen offset:{i*256}', tag=('x', 'h'))
        vm.add(f'buffer_load_dwordx4 {vr(RH + 16)}, v223, {srd(SX)}, 0 offen offset:1024', tag=('x', 'h'))
        for q in (2, 3):
            so = ['0', 's61', 's62', 's63'][q]
            for m in range(9):
                vm.add(f'buffer_load_dwordx4 {vr(RX + (q*9+m)*4)}, v4, {srd(SX)}, {so} offen offset:{m*128}', tag=('x', q))
        self.stamp(2, True)
        self.sprinkle_on(vm, 4)
        mk(SQ, 38, 1990656); mk(SO, 40, 663552); mk(SD, 42, 5308416); mk(SW, 48, 0x10000000)
        E.emits(f'''s_cmp_ge_u32 s{sW}, 2
        s_cselect_b32 s{SF}, s46, s44
        s_cselect_b32 s{SF+1}, s47, s45
        s_mov_b32 s{SF+2}, 5308416
        s_mov_b32 s{SF+3}, 0x20000''')
        mk(SOUT, 58, 2359296)
        self.ffn_dma_setup_full(None, T=8)
        self.stamp(3, True)
        E.emits(f'''v_mov_b32 v8, 0
        v_lshlrev_b32 v9, 2, v{vLANE}
        v_add_u32 v9, {MISC}, v9
        ds_write_b32 v9, v8 offset:{ZERO}''')
        E.emits(f'''v_lshrrev_b32 v8, 2, v6
        v_and_b32 v9, 3, v6
        v_lshlrev_b32 v8, 10, v8
        v_lshl_add_u32 v8, v9, 8, v8
        v_xor_b32 v9, v5, v6
        v_lshl_add_u32 v10, v9, 4, v8
        v_add_u32 v11, 128, v10
        s_mul_i32 s3, s{sW}, 18432
        s_add_u32 s3, s3, {XA}
        v_add_u32 v212, s3, v10
        v_add_u32 v213, s3, v11
        s_cmp_eq_u32 s{sW}, 1
        s_cselect_b32 s3, {HALO1}, s3
        v_add_u32 v214, s3, v10
        v_add_u32 v215, s3, v11''')
        E.emits(f'''s_lshl_b32 s3, s{sW}, 5
        s_add_u32 s3, s3, 16
        v_add_u32 v216, s3, v5
        v_lshlrev_b32 v216, 2, v216
        v_add_u32 v216, {MISC}, v216''')
        E.emits(f'''s_lshl_b32 s3, s{sW}, 2
        v_add_u32 v8, s3, v{vG}
        v_and_b32 v9, 7, v{vT16}
        v_xor_b32 v9, v8, v9
        v_lshrrev_b32 v10, 2, v{vT16}
        v_and_b32 v11, 3, v{vT16}
        v_lshlrev_b32 v10, 10, v10
        v_lshl_add_u32 v10, v11, 8, v10
        v_lshl_add_u32 v10, v9, 4, v10
        v_add_u32 v217, {HALO0}, v10
        v_add_u32 v9, {16384}, v217
        v_lshlrev_b32 v10, 4, v{vLANE}
        v_add_u32 v10, {MISC + VXB}, v10
        v_cmp_gt_u32 vcc, 8, v{vT16}
        v_cndmask_b32 v218, v10, v9, vcc
        v_lshlrev_b32 v219, 2, v8
        v_add_u32 v219, {MISC}, v219
        v_mov_b32 v220, 0x3f803f80''')
        E.emits(f'''v_xor_b32 v8, v{vT16}, v{vG}
        v_lshlrev_b32 v9, 8, v{vG}
        v_lshl_add_u32 v221, v8, 4, v9
        v_xor_b32 v222, 64, v221''')
        self.sprinkle_off()
        self.stamp(4, True)
        d01 = Side('d01')
        self.dma_ffn(0, 0, 0, d01)
        self.dma_ffn(1, 0, 1, d01)
        self.sprinkle_on(d01, 16)
        self.ln_group(RX, 36, 212, 216, 0, tag=('x', 0), red8=True)
        self.stamp(5, True)
        self.ln_group(RX + 36, 36, 213, 216, 32, tag=('x', 1), red8=True)
        self.sprinkle_off()
        pf = Side('pf')
        self.pf_gu(pf, 7, 94, 223)
        self.pf_code(pf, 7, 94, 223)
        self.sprinkle_on(pf, 2)
        self.ln_group(RH, 20, None, 219, 0, tag=('x', 'h'), red8=False)
        self.sprinkle_off()
        self.stamp(6, True)
        E.wait_lgkm(0)
        E.barrier()
        E.emits(f'''s_mul_i32 s3, s{sTG}, 36864
        s_add_u32 s3, s3, {XA}
        v_add_u32 v7, s3, v221
        v_add_u32 v8, s3, v222''')
        rd = Side()
        for s in range(18):
            a = 7 + (s & 1)
            rd.add(f'ds_read_b128 {breg(s,0)}, v{a} offset:{s*1024}')
            rd.add(f'ds_read_b128 {breg(s,2)}, v{a} offset:{18432 + s*1024}')
        self.ln_group(RX + 72, 36, None, 216, 64, tag=('x', 2), red8=True, side=rd)
        drain(E, [rd])
        E.wait_lgkm(0)
        E.barrier()
        wr = Side()
        for m in range(9):
            wr.add(f'ds_write_b128 v214, {vr(RX + 72 + 4*m)} offset:{m*2048}')
        self.ln_group(RX + 108, 36, 215, 216, 96, tag=('x', 3), red8=True, side=wr)
        drain(E, [wr])
        self.stamp(7, True)
        E.wait_lgkm(0)
        E.barrier()
        E.emits(f'''s_mov_b32 s3, {HALO1}
        s_cmp_eq_u32 s{sTG}, 0
        s_cselect_b32 s3, s3, {XA + 3*18432}
        v_add_u32 v9, s3, v221
        v_add_u32 v10, s3, v222
        s_lshl_b32 s3, s{sTG}, 6
        s_add_u32 s3, s3, 16
        v_add_u32 v11, s3, v{vT16}
        v_lshlrev_b32 v11, 2, v11
        v_add_u32 v11, {MISC}, v11''')
        for tt in range(4):
            E.emit(f'ds_read_b32 v{vC1+tt}, v11 offset:{RSTD + tt*64}')
            E.emit(f'ds_read_b32 v{vC2+tt}, v11 offset:{C2A + tt*64}')
        for s in range(18):
            E.emit(f'ds_read_b128 {breg(s,1)}, v{7 + (s&1)} offset:{s*1024}')
            E.emit(f'ds_read_b128 {breg(s,3)}, v{9 + (s&1)} offset:{s*1024}')
        self.tr_setup('full', vTR)
        E.emits(f'''s_mov_b32 s3, {HALO0}
        s_cmp_eq_u32 s{sTG}, 0
        s_cselect_b32 s3, s3, {HALO1}
        v_add_u32 v{vX0+2}, s3, v221
        v_add_u32 v{vX0+3}, s3, v222''')
        for tt in range(4):
            E.emit(f'v_mul_f32 v{vC1+tt}, {hex(f2u(-LOG2E))}, v{vC1+tt}')
        E.wait_lgkm(0)
        self.stamp(8, True)
        E.barrier()

    def pf_qkv(self, sd, T, S, D):
        if self.dbg.get('nopf'): return
        A = sd.add
        A(f's_lshr_b32 s{S}, s2, 3', f's_and_b32 s{S+1}, s2, 7',
          f's_mul_i32 s{S+2}, s{sW}, 27', f'v_min_u32 v{T}, 26, v{vLANE}', f'v_add_u32 v{T}, s{S+2}, v{T}',
          f'v_mul_u32_u24 v{T+1}, 43, v{T}', f'v_lshrrev_b32 v{T+1}, 8, v{T+1}', f'v_mul_u32_u24 v{T+2}, 6, v{T+1}', f'v_sub_u32 v{T+2}, v{T}, v{T+2}',
          f'v_lshrrev_b32 v{T}, 1, v{T+2}', f'v_and_b32 v{T+2}, 1, v{T+2}', f'v_mul_u32_u24 v{T+1}, 3456, v{T+1}', f'v_mul_u32_u24 v{T}, 1152, v{T}',
          f'v_add_u32 v{T+1}, v{T+1}, v{T}', f'v_lshl_add_u32 v{T+1}, v{T+2}, 7, v{T+1}',
          f's_mul_i32 s{S+2}, s{S}, {18*3456}', f's_mul_i32 s{S+3}, s{S+1}, 144', f's_add_u32 s{S+2}, s{S+2}, s{S+3}')
        sd.add_notrack(f'buffer_load_dword v{D}, v{T+1}, {srd(SQ)}, s{S+2} offen')

    def pf_code(self, sd, T, S, D):
        if self.dbg.get('nopf'): return
        A = sd.add
        sd.q.append([RawIns('s_getpc_b64 s[96:97]'), RawIns('L_pc:')])
        A(f's_lshr_b32 s{S}, s2, 3', f's_lshl_b32 s{S}, s{S}, 2', f's_add_u32 s{S}, s{S}, s{sW}', f's_lshl_b32 s{S}, s{S}, 8',
          f's_add_u32 s{S}, s{S}, 24576',
          f'v_min_u32 v{T}, 1, v{vLANE}', f'v_lshlrev_b32 v{T}, 7, v{T}', f'v_add_u32 v{T}, s{S}, v{T}')
        sd.q.append([RawIns(f'v_min_u32 v{T}, L_main_end-L_pc, v{T}')])
        sd.add_notrack(f'global_load_dword v{D}, v{T}, s[96:97]')

    def pf_gu(self, sd, T, S, D):
        if self.dbg.get('nopf'): return
        A = sd.add
        A(f's_lshr_b32 s{S}, s2, 3', f's_and_b32 s{S+1}, s2, 7',
          f'v_mul_u32_u24 v{T}, 57, v{vLANE}', f'v_lshrrev_b32 v{T}, 9, v{T}', f'v_mul_u32_u24 v{T+1}, 9, v{T}',
          f'v_sub_u32 v{T+1}, v{vLANE}, v{T+1}', f'v_mul_u32_u24 v{T}, 9216, v{T}', f'v_lshl_add_u32 v{T}, v{T+1}, 7, v{T}',
          f's_mul_i32 s{S+2}, s{S}, 18', f's_and_b32 s{S+3}, s{sW}, 1', f's_mul_i32 s{S+3}, s{S+3}, 9', f's_add_u32 s{S+2}, s{S+2}, s{S+3}',
          f's_mul_i32 s{S+2}, s{S+2}, 9216', f's_mul_i32 s{S+3}, s{S+1}, 1152', f's_add_u32 s{S+2}, s{S+2}, s{S+3}')
        sd.add_notrack(f'buffer_load_dword v{D}, v{T}, {srd(SF)}, s{S+2} offen')
        A(f'v_add_u32 v{T+1}, 64, v{vLANE}', f'v_min_u32 v{T+1}, 80, v{T+1}', f'v_mul_u32_u24 v{T}, 57, v{T+1}', f'v_lshrrev_b32 v{T}, 9, v{T}',
          f'v_mul_u32_u24 v{T+3}, 9, v{T}', f'v_sub_u32 v{T+1}, v{T+1}, v{T+3}',
          f'v_mul_u32_u24 v{T}, 9216, v{T}', f'v_lshl_add_u32 v{T}, v{T+1}, 7, v{T}')
        sd.add_notrack(f'buffer_load_dword v{D}, v{T}, {srd(SF)}, s{S+2} offen')

    def pf_down(self, sd, T, S):
        if self.dbg.get('nopf'): return
        A = sd.add
        A(f's_lshr_b32 s{S}, s2, 3', f's_and_b32 s{S+1}, s2, 7',
          f'v_min_u32 v{T}, 40, v{vLANE}', f'v_lshlrev_b32 v{T}, 7, v{T}',
          f's_mul_i32 s{S+2}, s{S+1}, {5184*128}', f's_mul_i32 s{S+3}, s{S}, {162*128}', f's_add_u32 s{S+2}, s{S+2}, s{S+3}',
          f's_mul_i32 s{S+3}, s{sW}, {41*128}', f's_add_u32 s{S+2}, s{S+2}, s{S+3}')
        sd.add_notrack(f'buffer_load_dword v{T+1}, v{T}, {srd(SD)}, s{S+2} offen')
        A(f'v_min_u32 v{T}, 5, v{vLANE}', f'v_lshlrev_b32 v{T}, 7, v{T}',
          f's_mul_i32 s{S+2}, s{S+1}, {648*128}', f's_mul_i32 s{S+3}, s{S}, {21*128}', f's_add_u32 s{S+2}, s{S+2}, s{S+3}',
          f's_mul_i32 s{S+3}, s{sW}, {6*128}', f's_add_u32 s{S+2}, s{S+2}, s{S+3}')
        sd.add_notrack(f'buffer_load_dword v{T+1}, v{T}, {srd(SO)}, s{S+2} offen')

    def ln_finish(self, s1, s2, negmean, c2, rstd):
        self.E.emits(f'''v_mul_f32 v{negmean}, {hex(f2u(-1.0/576))}, v{s1}
        v_mul_f32 v{c2}, {hex(f2u(1.0/576))}, v{s2}
        v_fma_f32 v{c2}, -v{negmean}, v{negmean}, v{c2}
        v_max_f32 v{c2}, 0, v{c2}
        v_add_f32 v{c2}, {hex(f2u(1e-5))}, v{c2}
        v_rsq_f32 v{rstd}, v{c2}''')

    def ln_group(self, R, n, wr, statidx, statoff, tag, red8, side=None):
        E = self.E
        a1, b1 = 11, 13
        ONES = 220
        E.wait_vm_tag(tag)
        def sidepop():
            if side is not None and side.q:
                E.emit(side.q.pop(0))
        ac = [vTMP + i for i in range(8)]
        for i in range(0, n, 4):
            for k in range(4):
                if i == 0:
                    E.emit(f'v_dot2_f32_bf16 v{ac[k]}, v{R+i+k}, v{ONES}, 0')
                    E.emit(f'v_dot2_f32_bf16 v{ac[4+k]}, v{R+i+k}, v{R+i+k}, 0')
                else:
                    E.emit(f'v_dot2c_f32_bf16 v{ac[k]}, v{R+i+k}, v{ONES}')
                    E.emit(f'v_dot2c_f32_bf16 v{ac[4+k]}, v{R+i+k}, v{R+i+k}')
            sidepop(); sidepop()
        E.emits(f'''v_add_f32 v{ac[0]}, v{ac[0]}, v{ac[1]}
        v_add_f32 v{ac[4]}, v{ac[4]}, v{ac[5]}
        v_add_f32 v{ac[2]}, v{ac[2]}, v{ac[3]}
        v_add_f32 v{ac[6]}, v{ac[6]}, v{ac[7]}
        v_add_f32 v{a1}, v{ac[0]}, v{ac[2]}
        v_add_f32 v{b1}, v{ac[4]}, v{ac[6]}''')
        if red8:
            steps = ['quad_perm:[1,0,3,2]', 'quad_perm:[2,3,0,1]', 'row_half_mirror']
        else:
            steps = ['row_ror:1', 'row_ror:2', 'row_ror:4', 'row_ror:8']
        for st in steps:
            E.emit(f'v_add_f32_dpp v{a1}, v{a1}, v{a1} {st} row_mask:0xf bank_mask:0xf')
            E.emit(f'v_add_f32_dpp v{b1}, v{b1}, v{b1} {st} row_mask:0xf bank_mask:0xf')
            sidepop()
        NM, C2, RS = 12, 14, 15
        self.ln_finish(a1, b1, NM, C2, RS)
        E.emits(f'''ds_write_b32 v{statidx}, v{RS} offset:{RSTD + statoff}
        ds_write_b32 v{statidx}, v{C2} offset:{C2A + statoff}''')
        T = vTMP
        for i in range(n + 2):
            if i < n:
                t = T + (i % 4) * 2
                E.emit(f'v_dot2_f32_bf16 v{t}, v{R+i}, s{sSEL_LO}, v{NM}')
                E.emit(f'v_dot2_f32_bf16 v{t+1}, v{R+i}, s{sSEL_HI}, v{NM}')
            if i >= 2:
                k = i - 2
                t = T + (k % 4) * 2
                E.emit(f'v_cvt_pk_bf16_f32 v{R+k}, v{t}, v{t+1}')
                if k % 4 == 3:
                    m = k // 4
                    if not red8:
                        if m < 4: E.emit(f'ds_write_b128 v217, {vr(R + k - 3)} offset:{m*4096}')
                        else: E.emit(f'ds_write_b128 v218, {vr(R + k - 3)}')
                    elif wr is not None:
                        E.emit(f'ds_write_b128 v{wr}, {vr(R + k - 3)} offset:{m*2048}')
            if i % 2 == 0:
                sidepop()

    def qkv_dma_setup(self, side, T):
        L = [f's_lshl_b32 s71, s{sW}, 10', 's_sub_u32 s71, s71, 4096',
             f'v_lshrrev_b32 v{T}, 3, v{vLANE}', f'v_and_b32 v{T+1}, 7, v{vLANE}',
             f'v_and_b32 v{T+2}, 2, v{T}', f'v_xor_b32 v{T+1}, v{T+1}, v{T+2}',
             f's_lshl_b32 s94, s{sFH}, 2', f'v_xor_b32 v{T+1}, s94, v{T+1}',
             f'v_min_u32 v{T+1}, 5, v{T+1}',
             f'v_subrev_u32 v{T+3}, 3, v{T+1}', f'v_min_u32 v{T+3}, v{T+3}, v{T+1}',
             f'v_sub_u32 v{T+1}, v{T+1}, v{T+3}', f'v_mul_u32_u24 v{T+1}, 12, v{T+1}',
             f'v_lshlrev_b32 v{T+2}, 4, v{T+3}', f'v_min_u32 v{T+2}, 20, v{T+2}', f'v_add_u32 v{T+2}, v{T+2}, v{T+1}',
             f's_lshl_b32 s94, s{sW}, 3', f'v_add_u32 v{T}, s94, v{T}', f'v_mul_u32_u24 v{T}, 3456, v{T}',
             f'v_add_u32 v{T}, v{T}, v{T+2}', f's_mul_i32 s94, s{sFC}, 72', f'v_add_u32 v{vQD}, s94, v{T}']
        self._out(L, side)

    def dma_qkv(self, st, j, side=None):
        lines = []
        for sl in range(2):
            lines.append([f's_add_u32 s6, s38, {(64*j + 32*sl)*3456}', 's_addc_u32 s7, s39, 0'])
            for seg in range(3):
                lines.append(f's_add_u32 m0, s71, {slot_off(st) + (sl*3+seg)*4096 - seg*1152 + 4096}')
                lines.append(f'global_load_lds_dwordx4 v{vQD}, s[6:7] offset:{seg*1152}')
        self._out(lines, side, ('st', st))

    def ffn_dma_setup_full(self, side=None, T=100):
        L = [f's_lshr_b32 s94, s{sW}, 1', f's_mul_i32 s{sLW}, s94, 12288', f's_and_b32 s94, s{sW}, 1',
             f's_mul_i32 s95, s94, 6144', f's_add_u32 s{sLW}, s{sLW}, s95',
             f's_mul_i32 s95, s94, {48*9216}',
             f'v_lshrrev_b32 v{T}, 3, v{vLANE}', f'v_and_b32 v{T+1}, 7, v{vLANE}',
             f'v_and_b32 v{T+2}, 2, v{T}', f'v_xor_b32 v{T+1}, v{T+1}, v{T+2}',
             f'v_mul_u32_u24 v{T}, 9216, v{T}',
             f'v_add_u32 v{T}, s95, v{T}',
             f'v_xor_b32 v{T+2}, 4, v{T+1}',
             f'v_lshl_add_u32 v{T+1}, v{T+1}, 4, v{T}',
             f'v_lshl_add_u32 v{T+2}, v{T+2}, 4, v{T}']
        for n in range(6):
            L.append(f'v_add_u32 v{vDMA+n}, {n*8*9216 - (n%4)*1024}, v{T+1+(n&1)}')
        L += [f's_mul_i32 s{sFB}, s{sFC}, 576', f's_and_b32 s94, s{sFC}, 1',
              f's_lshl_b32 s95, s94, 6', f's_add_u32 s{sFHB}, s{sFB}, 512',
              [f's_cmp_eq_u32 s94, 1', f's_cselect_b32 s{sFHB}, s{sFB}, s{sFHB}'],
              f's_add_u32 s{sFB}, s{sFB}, s95',
              [f's_add_u32 s32, s{SF}, s{sFB}', f's_addc_u32 s33, s{SF+1}, 0'],
              [f's_add_u32 s34, s{SF}, s{sFHB}', f's_addc_u32 s35, s{SF+1}, 0']]
        self._out(L, side)

    def ffn_dma_setup_half(self, side=None):
        T = 8
        L = [f's_and_b32 s94, s{sW}, 1', f's_mul_i32 s95, s94, {96*9216}',
             f'v_lshrrev_b32 v{T}, 2, v{vLANE}', f'v_and_b32 v{T+1}, 3, v{vLANE}',
             f'v_lshrrev_b32 v{T+2}, 3, v{T}', f'v_lshlrev_b32 v{T+2}, 1, v{T+2}',
             f'v_xor_b32 v{T+1}, v{T+1}, v{T+2}',
             f'v_mul_u32_u24 v{T}, 9216, v{T}', f'v_add_u32 v{T}, s95, v{T}',
             f'v_lshl_add_u32 v{T}, v{T+1}, 4, v{T}']
        for n in range(6):
            L.append(f'v_add_u32 v{vDMA+n}, {n*16*9216 - (n%4)*1024}, v{T}')
        self._out(L, side)

    def dma_ffn(self, st, p, j, side=None):
        if p < 4:
            lines = [[f's_add_u32 s4, s32, {j*96*9216 + p*128}', 's_addc_u32 s5, s33, 0']]
        else:
            lines = [[f's_add_u32 s4, s34, {j*192*9216}', 's_addc_u32 s5, s35, 0']]
        for n in range(6):
            if n % 4 == 0:
                lines.append(f's_add_u32 m0, s{sLW}, {slot_off(st) + n*1024}')
            lines.append(f'global_load_lds_dwordx4 v{vDMA+n}, s[4:5] offset:{(n%4)*1024}')
        self._out(lines, side, ('st', st))

    def p2_setup(self, side=None):
        T = 8
        L = [f's_lshl_b32 s{sLW}, s{sW}, 10',
             f'v_lshrrev_b32 v{T}, 3, v{vLANE}', f'v_and_b32 v{T+1}, 7, v{vLANE}',
             f'v_and_b32 v{T+2}, 6, v{T}', f'v_xor_b32 v{T+1}, v{T+1}, v{T+2}',
             f'v_mul_u32_u24 v{T+2}, 1152, v{T}',
             f'v_lshl_add_u32 v{vDMA}, v{T+1}, 4, v{T+2}',
             [f's_cmp_lt_u32 s{sW}, 2', f's_cselect_b32 s94, 8, 2'], [f's_cmp_eq_u32 s{sW}, 3', f's_cselect_b32 s94, 0, s94'],
             f'v_mov_b32 v{T+2}, 0x40000000',
             [f'v_cmp_gt_u32 vcc, s94, v{T}', 's_nop 1', f'v_cndmask_b32 v{vDMA+1}, v{T+2}, v{vDMA}, vcc'],
             f's_lshr_b32 s94, s{sW}, 1', f's_and_b32 s95, s{sW}, 1', f's_lshl_b32 s95, s95, 3',
             f's_lshl_b32 s96, s94, 5', f's_add_u32 s96, s96, s95', f's_lshr_b32 s97, s{sFB}, 1', f's_add_u32 s96, s96, s97',
             f's_mul_i32 s96, s96, 1152']
        for p in range(4):
            for i in range(2):
                L.append(f's_add_u32 s{sK2 + 2*p + i}, s96, {(64*p + 16*i)*1152}')
        L += [f's_lshl_b32 s96, s94, 4', f's_add_u32 s96, s96, s95', f's_lshr_b32 s97, s{sFHB}, 1', f's_add_u32 s97, s96, s97',
              f's_mul_i32 s{sK2+8}, s97, 1152',
              f's_mul_i32 s97, s{sFC}, 36', f's_add_u32 s96, s96, s97',
              f's_mul_i32 s{sK2+9}, s96, 1152', f's_add_u32 s{sK2+10}, s{sK2+9}, {18*1152}']
        self._out(L, side)

    def dma_p2(self, st, side=None):
        half = (st - 36) % 2
        pos = range(0, 6) if half == 0 else range(6, 11)
        lines = []
        for n, ps in enumerate(pos):
            k = KORDER[ps]
            lines.append(f's_add_u32 m0, s{sLW}, {slot_off(st) + n*4096}')
            if k < 9:
                t = vDMA + 2 + (n % 2)
                lines.insert(len(lines) - 1, f'v_add_u32 v{t}, s{sK2+k}, v{vDMA}')
                lines.append(f'global_load_lds_dwordx4 v{t}, s[42:43]')
            else:
                lines.append(f'buffer_load_dwordx4 v{vDMA+1}, {srd(SO)}, s{sK2+k} offen lds')
        if half == 1:
            lines += [f'v_add_u32 v{vDMA}, 128, v{vDMA}', f'v_add_u32 v{vDMA+1}, 128, v{vDMA+1}']
        self._out(lines, side, ('st', st))

    def tr_setup(self, kind, base, side=None):
        T = vX0
        L = [f'v_bfe_u32 v{T}, v{vLANE}, 2, 2', f'v_and_b32 v{T+1}, 3, v{vLANE}']
        if kind == 'qkv':
            q, bq = vTRQ[0], vTRB[0]
            L += [f'v_lshlrev_b32 v{T+2}, 3, v{vG}', f'v_add_u32 v{T+2}, v{T+2}, v{T}', f'v_lshlrev_b32 v{T+2}, 7, v{T+2}',
                  f'v_lshrrev_b32 v{T}, 1, v{T}', f'v_and_b32 v{T+3}, 1, v{vG}', f'v_lshl_add_u32 v{T}, v{T+3}, 1, v{T}',
                  f'v_lshlrev_b32 v{T}, 1, v{T}',
                  f's_mul_i32 s3, s{sFH}, 3',
                  f'v_lshrrev_b32 v{T+3}, 1, v{T+1}', f'v_add_u32 v{T+3}, s3, v{T+3}', f'v_xor_b32 v{T+3}, v{T+3}, v{T}',
                  f'v_lshl_add_u32 v{q}, v{T+3}, 4, v{T+2}', f'v_and_b32 v{T+3}, 1, v{T+1}', f'v_lshl_add_u32 v{q}, v{T+3}, 3, v{q}',
                  f's_add_u32 s3, s3, 2', f'v_xor_b32 v{T+3}, s3, v{T}', f'v_lshl_add_u32 v{bq}, v{T+3}, 4, v{T+2}',
                  f'v_min_u32 v{T+1}, 2, v{T+1}', f'v_lshl_add_u32 v{bq}, v{T+1}, 12, v{bq}', f'v_add_u32 v{bq}, 8, v{bq}']
            for o in (q, bq):
                L += [f'v_add_u32 v{o+1}, 49152, v{o}', f'v_add_u32 v{o+2}, 98304, v{o}']
        elif kind in ('full', 'p2'):
            sh = 3 if kind == 'full' else 2
            L += [f'v_lshlrev_b32 v{T+2}, {sh}, v{vG}', f'v_add_u32 v{T+2}, v{T+2}, v{T}', f'v_lshlrev_b32 v{T+2}, 7, v{T+2}',
                  f'v_and_b32 v{T+3}, 1, v{T+1}', f'v_lshl_add_u32 v{T+2}, v{T+3}, 3, v{T+2}',
                  f'v_lshrrev_b32 v{T+1}, 1, v{T+1}', f'v_lshl_add_u32 v{T+2}, v{T+1}, 4, v{T+2}',
                  f'v_lshrrev_b32 v{T}, 1, v{T}', f'v_and_b32 v{T+3}, 1, v{vG}', f'v_lshl_add_u32 v{T}, v{T+3}, 1, v{T}',
                  f's_lshl_b32 s3, s{sFH}, 1']
            for i in range(2):
                L += [f'v_xor_b32 v{T+1}, s3, v{T}', f'v_lshl_add_u32 v{base+3*i}, v{T+1}, 5, v{T+2}',
                      f'v_add_u32 v{base+3*i+1}, 49152, v{base+3*i}', f'v_add_u32 v{base+3*i+2}, 98304, v{base+3*i}']
                if i == 0:
                    L.append('s_add_u32 s3, s3, 1')
        elif kind == 'half':
            L += [f'v_lshlrev_b32 v{T+2}, 3, v{vG}', f'v_add_u32 v{T+2}, v{T+2}, v{T}', f'v_lshlrev_b32 v{T+2}, 6, v{T+2}',
                  f'v_and_b32 v{T+3}, 1, v{T+1}', f'v_lshl_add_u32 v{T+2}, v{T+3}, 3, v{T+2}',
                  f'v_lshrrev_b32 v{T+1}, 1, v{T+1}', f's_lshl_b32 s3, s{sFH}, 1', f'v_add_u32 v{T+1}, s3, v{T+1}',
                  f'v_and_b32 v{T+3}, 1, v{vG}', f'v_lshlrev_b32 v{T+3}, 1, v{T+3}', f'v_xor_b32 v{T+1}, v{T+1}, v{T+3}',
                  f'v_lshl_add_u32 v{base}, v{T+1}, 4, v{T+2}',
                  f'v_add_u32 v{base+1}, 49152, v{base}', f'v_add_u32 v{base+2}, 98304, v{base}']
        self._out(L, side)

    def qkv_units(self, st0):
        QA, KA, BB, VA = S1, S1 + 16, S1 + 36, HR
        bufs = [(212, 216, 220, 168), (176, 180, 184, 188)]
        hb = (4, 8)
        units = []
        for s in range(18):
            j, sl = divmod(s, 2)
            st = st0 + j
            Aq, Ak, Ab, Av = bufs[s % 2]
            Hf = hb[s % 2]
            b, off = lds_base_sel(slot_off(st) + sl * 12288)
            reads = []
            for reg, seg in ((Aq, 0), (Ak, 1), (Av, 2)):
                for e in range(2):
                    reads.append(f'ds_read_b64_tr_b16 {vr(reg + e*2, 2)}, v{vTRQ[b]} offset:{off + seg*4096 + e*512}')
            for e in range(2):
                reads.append(f'ds_read_b64_tr_b16 {vr(Ab + e*2, 2)}, v{vTRB[b]} offset:{off + e*512}')
            reads.append(f'ds_read_b128 {vr(Hf)}, v{vX0+2+(s&1)} offset:{s*1024}')
            def B(kt):
                return vr(Hf) if kt == 0 else breg(s, kt - 1)
            m = []
            def c(r): return '0' if s == 0 else vr(r)
            for tt in range(4):
                m.append(f'v_mfma_f32_16x16x32_bf16 {vr(QA+4*tt)}, {vr(Aq)}, {B(tt+1)}, {c(QA+4*tt)}')
            for kt in (1, 2, 3, 4, 0):
                m.append(f'v_mfma_f32_16x16x32_bf16 {vr(KA+4*kt)}, {vr(Ak)}, {B(kt)}, {c(KA+4*kt)}')
            for kt in (1, 2, 3, 4, 0):
                m.append(f'v_mfma_f32_16x16x32_bf16 {vr(VA+4*kt)}, {B(kt)}, {vr(Av)}, {c(VA+4*kt)}')
            for kt in (1, 2, 3, 4, 0):
                m.append(f'v_mfma_f32_16x16x32_bf16 {vr(BB+4*kt)}, {vr(Ab)}, {B(kt)}, {c(BB+4*kt)}')
            units.append(dict(reads=reads, mfma=m, stage=st, last=(sl == 1), read_start=(9 if s == 17 else 0),
                              need=[r for x in (Aq, Ak) for r in range(x, x + 4)]))
        return units

    def ffn_units(self, p, st0, accset):
        units = []
        if p < 4:
            for j in range(6):
                st = st0 + j
                for sl in range(3):
                    s = j * 3 + sl
                    for i in range(2):
                        buf = len(units) % 2
                        reads = []
                        for m in range(2):
                            b, off = lds_base_sel(slot_off(st) + m * 12288 + sl * 4096)
                            for e in range(2):
                                reads.append(f'ds_read_b64_tr_b16 {vr(AF + buf*8 + m*4 + e*2, 2)}, v{vTR + 3*i + b} offset:{off + e*512}')
                        mf = []
                        for m in range(2):
                            for tt in range(4):
                                a = accset + (i * 2 + m) * 16 + tt * 4
                                c = '0' if s == 0 else vr(a)
                                mf.append(f'v_mfma_f32_16x16x32_bf16 {vr(a)}, {vr(AF + buf*8 + m*4)}, {breg(s,tt)}, {c}')
                        units.append(dict(reads=reads, mfma=mf, stage=st, last=(sl == 2 and i == 1)))
        else:
            for j in range(3):
                st = st0 + j
                for sl in range(6):
                    s = j * 6 + sl
                    buf = len(units) % 2
                    reads = []
                    for m in range(2):
                        b, off = lds_base_sel(slot_off(st) + m * 12288 + sl * 2048)
                        for e in range(2):
                            reads.append(f'ds_read_b64_tr_b16 {vr(AF + buf*8 + m*4 + e*2, 2)}, v{self.vTRH + b} offset:{off + e*256}')
                    mf = []
                    for m in range(2):
                        for tt in range(4):
                            a = accset + m * 16 + tt * 4
                            c = '0' if s == 0 else vr(a)
                            mf.append(f'v_mfma_f32_16x16x32_bf16 {vr(a)}, {vr(AF + buf*8 + m*4)}, {breg(s,tt)}, {c}')
                    units.append(dict(reads=reads, mfma=mf, stage=st, last=(sl == 5)))
        return units

    def p2_units(self, panel, st0, accset):
        units = []
        for ps in range(11):
            half = 0 if ps < 6 else 1
            st = st0 + half
            kl = ps if ps < 6 else ps - 6
            buf = (panel * 11 + ps) % 2
            reads = []
            for i in range(2):
                b, off = lds_base_sel(slot_off(st) + kl * 4096)
                for e in range(2):
                    reads.append(f'ds_read_b64_tr_b16 {vr(AF + buf*8 + i*4 + e*2, 2)}, v{vTR + 3*i + b} offset:{off + e*2048}')
            mf = []
            for i in range(2):
                for tt in range(4):
                    a = accset + i * 16 + tt * 4
                    c = '0' if ps == 0 else vr(a)
                    bi = (ps * 4 + tt) * 4
                    mf.append(f'v_mfma_f32_16x16x32_bf16 {vr(a)}, {vr(AF + buf*8 + i*4)}, a[{bi}:{bi+3}], {c}')
            units.append(dict(reads=reads, mfma=mf, stage=st, last=(ps == 5 or ps == 10)))
        return units

    def silu_stream(self, accset, ntile, dests, sd=None):
        sd = sd or Side('silu')
        items = []
        for i in range(ntile):
            for tt in range(4):
                for r in range(4):
                    g = accset + (i * 2) * 16 + tt * 4 + r
                    u = accset + (i * 2 + 1) * 16 + tt * 4 + r
                    items.append((g, u, tt, i, r))
        nT = 8
        for q in range(0, len(items), 4):
            grp = items[q:q + 4]
            ts = [vTMP + ((q + k) % nT) for k in range(4)]
            for k, (g, u, tt, i, r) in enumerate(grp):
                sd.add(f'v_mul_f32 v{ts[k]}, v{g}, v{vC1+tt}')
            for k, (g, u, tt, i, r) in enumerate(grp):
                sd.add(f'v_exp_f32 v{ts[k]}, v{ts[k]}')
                sd.add(f'v_mul_f32 v{u}, v{g}, v{u}')
            for k, (g, u, tt, i, r) in enumerate(grp):
                sd.add(f'v_fma_f32 v{ts[k]}, v{ts[k]}, v{vC2+tt}, v{vC2+tt}')
            for k, (g, u, tt, i, r) in enumerate(grp):
                sd.add(f'v_rcp_f32 v{ts[k]}, v{ts[k]}')
            for k, (g, u, tt, i, r) in enumerate(grp):
                sd.add(f'v_mul_f32 v{u}, v{u}, v{ts[k]}')
            g, u, tt, i, r = grp[0]
            d = dests[i][tt]
            sd.add(f'v_cvt_pk_bf16_f32 v{d}, v{u}, v{u+1}')
            sd.add(f'v_cvt_pk_bf16_f32 v{d+1}, v{u+2}, v{u+3}')
        return sd

    def run_units(self, units, nxt_reads, sides, dma_for_stage, hooks=None):
        E = self.E
        hooks = hooks or {}
        dma = Side('dma')
        cur_stage = None
        n_in_stage = 0
        for ui, u in enumerate(units):
            if u['stage'] != cur_stage:
                cur_stage = u['stage']
                drain(E, [dma])
                dma = dma_for_stage(cur_stage) or Side()
                stage_units = [x for x in units if x['stage'] == cur_stage]
                nload_tot = sum(1 for x in dma.q if not isinstance(x, list) and x.kind == 'dma')
                nitems_tot = len(dma.q)
                k_in_stage = 0
            k_in_stage += 1
            nr = list(units[ui + 1]['reads'] if ui + 1 < len(units) else nxt_reads)
            if u['last']:
                E.wait_lgkm(0)
                E.wait_vm_tag(('st', cur_stage + 1))
                if ('prebar', ui) in hooks: hooks[('prebar', ui)]()
                E.barrier()
            if ui in hooks: hooks[ui]()
            target_left = nitems_tot - (nitems_tot * k_in_stage) // len(stage_units)
            mf = u['mfma']
            need = u.get('need')
            if need is None:
                need = list(range(AF + (0 if f'v[{AF}:{AF+3}]' in mf[0] else 8), AF + (8 if f'v[{AF}:{AF+3}]' in mf[0] else 16)))
            E.wait_regs([('v', r) for r in need])
            rs = u.get('read_start', 0)
            for i, m in enumerate(mf):
                E.emit(m)
                budget = 8
                if nr and i >= rs:
                    E.emit(nr.pop(0))
                    budget -= 4
                    if len(nr) > len(mf) - i - 1 and nr:
                        E.emit(nr.pop(0)); budget -= 4
                elif len(dma.q) > target_left and (not nr):
                    while len(dma.q) > target_left and budget > 0:
                        ins = dma.q.pop(0)
                        if isinstance(ins, list):
                            for y in ins: E.emit(y)
                            budget -= 4 * len(ins)
                        else:
                            E.emit(ins)
                            budget -= 8 if ins.kind == 'dma' else 4
                if budget > 0:
                    fill_gap(E, sides, budget)
            while nr:
                E.emit(nr.pop(0))
            if ('post', ui) in hooks: hooks[('post', ui)]()
        drain(E, [dma])

    def attention_setup(self, sd):
        A = sd.add
        RQ, BA, BBI = 4, 8, 12
        T0, T1 = vX0, vX0 + 1
        LE = ['s[88:89]', 's[90:91]', 's[92:93]', 's[100:101]']
        ODD = 's[98:99]'
        A(f'v_lshlrev_b32 v{T0}, 2, v{vG}', f'v_and_b32 v{T1}, 1, v{vT16}', f'v_cmp_eq_u32 {ODD}, 1, v{T1}')
        for r in range(4):
            A(f'v_add_u32 v{T1}, {r}, v{T0}', f'v_cmp_le_u32 {LE[r]}, v{T1}, v{vT16}')
        for tt in range(4):
            A(f'v_mul_f32 v{RQ+tt}, {hex(f2u(-SCALE))}, v{vC1+tt}')
        A(f'v_mov_b32 v{T1}, {hex(f2u(-1e30))}')
        for r in range(4):
            if r % 2 == 0:
                sd.group(f's_andn2_b64 vcc, {LE[r]}, {ODD}', f'v_cndmask_b32 v{BBI+r}, v{T1}, 0, vcc')
                sd.group(f's_nor_b64 vcc, {LE[r]}, {ODD}', f'v_cndmask_b32 v{BA+r}, v{T1}, 0, vcc')
            else:
                sd.group(f's_and_b64 vcc, {LE[r]}, {ODD}', f'v_cndmask_b32 v{BBI+r}, v{T1}, 0, vcc')
                sd.group(f's_andn2_b64 vcc, {ODD}, {LE[r]}', f'v_cndmask_b32 v{BA+r}, v{T1}, 0, vcc')

    def attention_streams(self):
        QA, KA, BB, VA = S1, S1 + 16, S1 + 36, HR
        VP = HR + 20
        RK = S1 + 56
        RQ, BA, BBI = 4, 8, 12
        T0, T1 = vX0, vX0 + 1
        sd = Side('attn'); A = sd.add
        self.attention_setup(sd)
        A(f's_lshl_b32 s3, s{sTG}, 8', f's_add_u32 s3, s3, {MISC}', f'v_lshl_add_u32 v{T0}, v{vT16}, 2, s3')
        for kt in range(5):
            A(f'ds_read_b32 v{RK+kt}, v{T0} offset:{RSTD + kt*64}')
        sd.group(f'v_cmp_eq_u32 vcc, 0, v{vG}')
        for tt in range(4):
            q = QA + 4 * tt; b = BB + 4 * (tt + 1)
            A(f'v_cndmask_b32 v{T1}, 0, v{RQ+tt}, vcc',
              f'v_mul_f32 v{q}, v{q}, v{RQ+tt}', f'v_mul_f32 v{q+1}, v{q+1}, v{RQ+tt}',
              f'v_mul_f32 v{q+2}, v{q+2}, v{RQ+tt}', f'v_mul_f32 v{q+3}, v{q+3}, v{RQ+tt}',
              f'v_mul_f32 v{vX0+2}, v{b+2}, v{T1}', f'v_mul_f32 v{vX0+3}, v{b+3}, v{T1}',
              f'v_cvt_pk_bf16_f32 v{q}, v{q}, v{q+1}', f'v_cvt_pk_bf16_f32 v{q+1}, v{q+2}, v{q+3}',
              f'v_cvt_pk_bf16_f32 v{q+2}, v{vX0+2}, v{vX0+3}', f'v_mov_b32 v{q+3}, 0')
        for kt in range(5):
            k = KA + 4 * kt; b = BB + 4 * kt
            A(f'v_mul_f32 v{k}, v{k}, v{RK+kt}', f'v_mul_f32 v{k+1}, v{k+1}, v{RK+kt}',
              f'v_mul_f32 v{k+2}, v{k+2}, v{RK+kt}', f'v_mul_f32 v{k+3}, v{k+3}, v{RK+kt}',
              f'v_mul_f32 v{b+2}, v{b+2}, v{RK+kt}', f'v_mul_f32 v{b+3}, v{b+3}, v{RK+kt}',
              f'v_cvt_pk_bf16_f32 v{k}, v{k}, v{k+1}', f'v_cvt_pk_bf16_f32 v{k+1}, v{k+2}, v{k+3}',
              f'v_cvt_pk_bf16_f32 v{b+2}, v{b+2}, v{b+3}',
              f'v_mov_b32 v{k+2}, 0', f'v_mov_b32 v{b+3}, v{b+2}', f'v_mov_b32 v{k+3}, 0',
              f'v_permlane16_swap_b32 v{b+3}, v{k+2}')
        A(f's_mul_i32 s3, s{sW}, 640', f's_add_u32 s3, s3, {MISC + VXB}',
          f'v_lshlrev_b32 v{T0}, 1, v{vT16}', f'v_mov_b32 v{T1}, 340')
        sd.group(f'v_cmp_eq_u32 vcc, 2, v{vG}', 's_nop 1', f'v_cndmask_b32 v{T0}, v{T1}, v{T0}, vcc')
        A(f'v_add_u32 v{T0}, s3, v{T0}')
        for kt in range(5):
            b = BB + 4 * kt
            A(f'ds_write_b16 v{T0}, v{b+2} offset:{kt*32}', f'ds_write_b16_d16_hi v{T0}, v{b+2} offset:{160 + kt*32}')
        A(f'v_mul_u32_u24 v{T1}, 160, v{vT16}', f'v_lshl_add_u32 v{T1}, v{vG}, 3, v{T1}', f'v_add_u32 v{T1}, s3, v{T1}',
          f'v_mov_b32 v{T0}, {MISC + ZERO}')
        sd.group(f'v_cmp_gt_u32 vcc, 2, v{vT16}', 's_nop 1', f'v_cndmask_b32 v{T1}, v{T0}, v{T1}, vcc')
        A(f's_lshl_b32 s3, s{sTG}, 8', f's_add_u32 s3, s3, {MISC}', f'v_lshl_add_u32 v{T0}, v{vG}, 4, s3')
        for kt in range(5):
            v = VA + 4 * kt
            rv = RK + (kt % 2) * 4
            A(f'ds_read_b128 {vr(rv)}, v{T0} offset:{RSTD + kt*64}')
            if kt >= 1:
                v0 = VA + 4 * (kt - 1); r0 = RK + ((kt - 1) % 2) * 4
                for r in range(4): A(f'v_mul_f32 v{v0+r}, v{v0+r}, v{r0+r}')
                A(f'v_cvt_pk_bf16_f32 v{VP+2*(kt-1)}, v{v0}, v{v0+1}', f'v_cvt_pk_bf16_f32 v{VP+2*(kt-1)+1}, v{v0+2}, v{v0+3}')
        v0 = VA + 16; r0 = RK
        for r in range(4): A(f'v_mul_f32 v{v0+r}, v{v0+r}, v{r0+r}')
        A(f'v_cvt_pk_bf16_f32 v{VP+8}, v{v0}, v{v0+1}', f'v_cvt_pk_bf16_f32 v{VP+9}, v{v0+2}, v{v0+3}')
        VXF = VA
        for kt in range(5):
            A(f'ds_read_b64 {vr(VXF+2*kt, 2)}, v{T1} offset:{kt*32}')
        BA0C = VA + 12
        A(f's_lshl_b32 s3, s{sTG}, 6', f's_add_u32 s3, s3, s{sT0}', f'v_mov_b32 v{T1}, {hex(f2u(-1e30))}')
        sd.group(f's_cmp_eq_u32 s3, 0', f's_cselect_b64 vcc, -1, 0')
        for r in range(4):
            A(f'v_cndmask_b32 v{BA0C+r}, v{BA+r}, v{T1}, vcc')
        A(f's_lshl_b32 s3, s{sW}, 12', f's_add_u32 s3, s3, {EXO}', f'v_lshl_add_u32 v{T0}, v{vLANE}, 4, s3')
        def soft(tts, SA, PF, M):
            s2 = Side('soft'); B = s2.add
            SB = SA + 4; Mx, L = M + 1, M + 2
            for tt in tts:
                kt = tt + 1
                ba = BA0C if tt == 0 else BA
                B(f'v_mfma_f32_16x16x32_bf16 {vr(SA)}, {vr(KA+4*(kt-1))}, {vr(QA+4*tt)}, {vr(ba)}',
                  f'v_mfma_f32_16x16x32_bf16 {vr(SB)}, {vr(KA+4*kt)}, {vr(QA+4*tt)}, {vr(BBI)}')
                B(f'v_max3_f32 v{M}, v{SA}, v{SA+1}, v{SA+2}', f'v_max3_f32 v{M}, v{M}, v{SA+3}, v{SB}',
                  f'v_max3_f32 v{M}, v{M}, v{SB+1}, v{SB+2}', f'v_max_f32 v{M}, v{M}, v{SB+3}')
                B(*self.xlane(M, Mx, 'v_max_f32'))
                for r in range(8): B(f'v_sub_f32 v{SA+r}, v{SA+r}, v{M}')
                for r in range(8): B(f'v_exp_f32 v{SA+r}, v{SA+r}')
                for r in range(4): B(f'v_cvt_pk_bf16_f32 v{PF+r}, v{SA+2*r}, v{SA+2*r+1}')
                B(f'v_add_f32 v{L}, v{SA}, v{SA+1}')
                for r in range(2, 8): B(f'v_add_f32 v{L}, v{L}, v{SA+r}')
                B(f'v_mfma_f32_16x16x32_bf16 {vr(SA)}, {vr(VP+2*(kt-1))}, {vr(PF)}, 0',
                  f'v_mfma_f32_16x16x32_bf16 {vr(SB)}, {vr(VXF+2*(kt-1))}, {vr(PF)}, 0')
                B(*self.xlane(L, Mx))
                B(f'v_rcp_f32 v{L}, v{L}')
                for r in range(8): B(f'v_mul_f32 v{SA+r}, v{SA+r}, v{L}')
                for r in range(4): B(f'v_cvt_pk_bf16_f32 v{PF+r}, v{SA+2*r}, v{SA+2*r+1}')
                B(f'ds_write_b128 v{T0}, {vr(PF)} offset:{tt*1024}')
            return s2
        sa = soft((0, 1), BB, BB + 8, BB + 12)
        sb = soft((2, 3), BB + 16, VA + 16, RK + 4)
        return sd, sa, sb

    def store_stream(self, panel, accset):
        sd = Side('store')
        for tt in range(4):
            a0 = accset + tt * 4
            a1 = accset + 16 + tt * 4
            sd.add(f'v_cvt_pk_bf16_f32 v{a0}, v{a0}, v{a0+1}', f'v_cvt_pk_bf16_f32 v{a0+1}, v{a0+2}, v{a0+3}',
                   f'v_cvt_pk_bf16_f32 v{a0+2}, v{a1}, v{a1+1}', f'v_cvt_pk_bf16_f32 v{a0+3}, v{a1+2}, v{a1+3}')
            sd.add(f's_add_u32 s77, s{sPB}, {panel*16*16384 + tt*2*16384}')
            sd.add(f'buffer_store_dwordx4 {vr(a0)}, v11, {srd(SW)}, s77 offen' + (' sc1' if not self.dbg.get('plainst') else ''), tag=('ps', panel))
        return sd

    def interleave_drain(self, sa, sb):
        E = self.E
        while sa.q or sb.q:
            fill_gap(E, [sa, sb], 64)
            for s_ in (sa, sb):
                if s_.q:
                    x = s_.q.pop(0)
                    if isinstance(x, list):
                        for y in x: E.emit(y)
                    else: E.emit(x)

    def main_kernel(self):
        E = self.E
        self.prologue()
        self.stamp(2)
        for j in (2, 3, 4):
            self.dma_ffn(j, 0, j)
        if self.dbg.get('ln'):
            regs = [f'a{i}' for i in range(256)] + list(range(XV, XV + 32)) + list(range(vC1, vC1 + 8))
            self.dump_regs(regs, 0)
        def ffn_stage(st):
            if st < 6: return (0, st)
            if st < 33: return (1 + (st - 15) // 6, (st - 15) % 6)
            return (4, st - 33)
        self.vTRH = vTR
        def dma_for_stage(st):
            t = st + 4
            sd = Side('dma')
            if st == 0:
                return sd
            if 6 <= t <= 14:
                if t == 6: self.qkv_dma_setup(sd, 4)
                self.dma_qkv(t, t - 6, sd)
            elif t <= 35:
                if t == 33: self.ffn_dma_setup_half(sd)
                p, j = ffn_stage(t)
                self.dma_ffn(t, p, j, sd)
            elif t <= 37:
                if t == 36: self.p2_setup(sd)
                self.dma_p2(t, sd)
            return sd
        E.wait_vm_tag(('st', 0))
        E.barrier()
        p0 = self.ffn_units(0, 0, S0)
        for x in p0[0]['reads']:
            E.emit(x)
        qu = self.qkv_units(6)
        s0 = Side('p0side')
        self.tr_setup('qkv', None, s0)
        s0.add(f's_mov_b32 s3, {HALO0}')
        s0.group(f's_cmp_eq_u32 s{sTG}, 0', f's_cselect_b32 s3, s3, {HALO1}')
        s0.add(f'v_add_u32 v{vX0+2}, s3, v221', f'v_add_u32 v{vX0+3}, s3, v222')
        self.pf_qkv(s0, 8, 98, 15)
        s0.add(f's_lshl_b32 s3, s{sTB}, 7', f's_add_u32 s3, s3, {CTRL}', 'v_mov_b32 v11, 0',
               f'buffer_load_dword v11, v11, {srd(SW)}, s3 offen sc1',
               f's_mul_i32 s{sFLG}, s{sTB}, {9*128}', f's_add_u32 s{sFLG}, s{sFLG}, {CTRL + 4096}')
        def nonce():
            drain(E, [s0])
            E.emits(f'''v_readfirstlane_b32 s{sNONCE}, v11
            s_add_u32 s{sNONCE}, s{sNONCE}, 1''')
        self.run_units(p0, qu[0]['reads'], [s0], dma_for_stage, {30: nonce})
        drain(E, [s0])
        self.stamp(3)
        d0 = [[S0 + (i * 2 + 1) * 16 + tt * 4 for tt in range(4)] for i in range(2)]
        sl = self.silu_stream(S0, 2, d0)
        sl.add(f's_lshl_b32 s3, s{sTG}, 13', f's_lshl_b32 s59, s{sFH}, 3', f's_add_u32 s3, s3, s59', f's_add_u32 s3, s3, {EXP0}',
               f'v_lshl_add_u32 v15, v{vLANE}, 4, s3')
        def h0_writes():
            drain(E, [sl])
            for i in range(2):
                for tt in range(4):
                    E.emit(f'ds_write_b64 v15, {vr(d0[i][tt], 2)} offset:{(i*4+tt)*1024}')
        p1 = self.ffn_units(1, 15, S0)
        self.run_units(qu, p1[0]['reads'], [sl], dma_for_stage, {17: h0_writes})
        if self.dbg.get('qkv'):
            regs = list(range(S1, S1 + 56)) + list(range(HR, HR + 20))
            self.dump_regs(regs, 0)
        self.stamp(4)
        att, sa, sb = self.attention_streams()
        class LazySides(list):
            def __iter__(self2):
                if att.q: return iter([att])
                return iter([sa, sb])
        p2 = self.ffn_units(2, 21, S1)
        self.run_units(p1, p2[0]['reads'], LazySides(), dma_for_stage)
        drain(E, [att])
        self.interleave_drain(sa, sb)
        self.stamp(5)
        d1 = [[HR + (i * 4 + tt) * 2 for tt in range(4)] for i in range(2)]
        sl = self.silu_stream(S0, 2, d1)
        pfc = Side('pfc'); self.pf_down(pfc, 8, 98)
        p3 = self.ffn_units(3, 27, S0)
        self.run_units(p2, p3[0]['reads'], [pfc, sl], dma_for_stage)
        drain(E, [sl, pfc])
        self.stamp(10)
        d2 = [[HR + 16 + (i * 4 + tt) * 2 for tt in range(4)] for i in range(2)]
        self.vTRH = 4
        sl = Side()
        self.tr_setup('half', 4, sl)
        self.silu_stream(S1, 2, d2, sl)
        ph = self.ffn_units(4, 33, S1)
        self.run_units(p3, ph[0]['reads'], [sl], dma_for_stage)
        drain(E, [sl])
        self.stamp(11)
        d3 = [[S1 + 32 + (i * 4 + tt) * 2 for tt in range(4)] for i in range(2)]
        sl = Side()
        self.tr_setup('p2', vTR, sl)
        sl.add(f's_mul_i32 s3, s{sTG}, 24576', f's_add_u32 s3, s3, {3*SLOT}', f'v_lshl_add_u32 v15, v{vLANE}, 4, s3',
               f's_lshl_b32 s59, s{sFH}, 3', f'v_add_u32 v12, s59, v15',
               f's_lshl_b32 s3, s{sTG}, 12', f'v_lshl_add_u32 v7, v{vLANE}, 4, s3', f'v_add_u32 v13, s59, v7',
               f's_lshl_b32 s3, s{sTG}, 13', f's_add_u32 s3, s3, {NONRING}', f'v_lshl_add_u32 v14, v{vLANE}, 4, s3')
        self.silu_stream(S0, 2, d3, sl)
        pu = [self.p2_units(pn, 36 + 2 * pn, HR if pn == 0 else (S0 if pn % 2 == 1 else S1)) for pn in range(9)]
        def rd_frag(ps, tt):
            k = KORDER[ps]
            bi = (ps * 4 + tt) * 4
            if k < 2: a, off = 14, 16384 + (k * 4 + tt) * 1024
            elif k < 8: a, off = 15, ((k - 2) * 4 + tt) * 1024
            elif k == 8: a, off = 7, tt * 1024
            else: a, off = 14, ((k - 9) * 4 + tt) * 1024
            return f'ds_read_b128 a[{bi}:{bi+3}], v{a} offset:{off}'
        early = Side('early')
        for ps in range(4):
            for tt in range(4): early.add(rd_frag(ps, tt))
        wr12 = Side('wr12')
        for pi, d in enumerate((d1, d2)):
            for i in range(2):
                for tt in range(4):
                    wr12.add(f'ds_write_b64 v12, {vr(d[i][tt], 2)} offset:{((pi*2+i)*4+tt)*1024}')
        act = [sl]
        class Lazy2(list):
            def __iter__(self2): return iter(list(act))
        hooks = {6: lambda: act.insert(0, early), 12: lambda: act.insert(0, wr12),
                 ('prebar', 17): lambda: (drain(E, [wr12]), E.wait_lgkm(0))}
        self.run_units(ph, pu[0][0]['reads'], Lazy2(), dma_for_stage, hooks)
        drain(E, [early])
        self.stamp(6)
        self.pstamp(11)
        mid = Side('mid')
        for ps in range(4, 8):
            for tt in range(4): mid.add(rd_frag(ps, tt))
        dh = [[S1 + 48 + tt * 2 for tt in range(4)]]
        for i in range(2):
            for tt in range(4):
                sl.add(f'ds_write_b64 v12, {vr(d3[i][tt], 2)} offset:{((4+i)*4+tt)*1024}')
        self.silu_stream(S1, 1, dh, sl)
        for tt in range(4):
            sl.add(f'ds_write_b64 v13, {vr(dh[0][tt], 2)} offset:{tt*1024}')
        if self.dbg.get('h'):
            drain(E, [mid, sl]); E.wait_lgkm(0); E.barrier()
            for ps in range(8, 11):
                for tt in range(4): E.emit(rd_frag(ps, tt))
            self.dump_regs([f'a{i}' for i in range(176)], 0)
            E.barrier()
        self.p2_tail(pu, mid, sl, rd_frag)
        E.label('L_main_end')
        E.raw('s_endpgm')

    def flag_write(self, panel):
        E = self.E
        E.emit(f's_add_u32 s40, s41, {panel*128}')
        E.emit(f'buffer_store_dword v10, v3, {srd(SW)}, s40 offen sc1')

    def poll_issue(self, vF, sAddr, side=None):
        l = f'buffer_load_dword v{vF}, v8, {srd(SW)}, s{sAddr} offen sc1'
        self._out([l], side)

    def poll_check(self, vF, sAddr, name):
        E = self.E
        E.wait_regs([('v', vF)])
        E.raw(f'v_cmp_ne_u32 vcc, s{sNONCE}, v{vF}')
        E.raw('s_nop 4')
        E.raw('s_cmp_eq_u64 vcc, 0')
        E.raw(f's_cbranch_scc1 L_ok_{name}')
        E.raw('s_mov_b32 s3, 0')
        E.raw(f'L_spin_{name}:')
        E.raw('s_sleep 1')
        E.raw(f'buffer_load_dword v{vF}, v8, {srd(SW)}, s{sAddr} offen sc1')
        E.raw('s_waitcnt vmcnt(0)')
        E.raw(f'v_cmp_ne_u32 vcc, s{sNONCE}, v{vF}')
        E.raw('s_add_u32 s3, s3, 1')
        E.raw('s_nop 3')
        E.raw('s_cmp_eq_u64 vcc, 0')
        E.raw(f's_cbranch_scc1 L_ok_{name}')
        E.raw('s_cmp_lt_u32 s3, 0x40000')
        E.raw(f's_cbranch_scc1 L_spin_{name}')
        E.raw(f'L_ok_{name}:')
        E.ws += 8

    def red_loads(self, regs, sBase, vOff, side=None, tag=None):
        L = []
        for f in range(16):
            if f % 4 == 0:
                L.append(f's_add_u32 s49, s{sBase}, {f*1024}')
            L.append(f'buffer_load_dwordx4 {vr(regs[f])}, v{vOff}, {srd(SW)}, s49 offen offset:{(f%4)*1024} sc1')
        self._out(L, side, tag)

    def red_sum(self, regs, X, ACC, vAddr, side=None):
        L = []
        for d in range(4):
            L.append(f'v_lshlrev_b32 v{ACC+2*d}, 16, v{X+d}')
            L.append(f'v_and_b32 v{ACC+2*d+1}, 0xffff0000, v{X+d}')
        for f in range(16):
            for d in range(4):
                L.append(f'v_dot2c_f32_bf16 v{ACC+2*d}, v{regs[f]+d}, v6')
                L.append(f'v_dot2c_f32_bf16 v{ACC+2*d+1}, v{regs[f]+d}, v7')
        for d in range(4):
            L.append(f'v_cvt_pk_bf16_f32 v{X+d}, v{ACC+2*d}, v{ACC+2*d+1}')
        L.append(f'buffer_store_dwordx2 {vr(X, 2)}, v{vAddr}, {srd(SOUT)}, 0 offen')
        L.append(f'buffer_store_dwordx2 {vr(X+2, 2)}, v{vAddr}, {srd(SOUT)}, 0 offen offset:32')
        self._out(L, side)

    def p2_tail(self, pu, mid, sl, rd_frag):
        E = self.E
        E.emits(f'''s_mul_i32 s{sPB}, s{sTB}, {9*16*16384}
        s_lshl_b32 s3, s{sTG}, 3
        s_add_u32 s3, s3, s{sFH}
        s_lshl_b32 s3, s3, 14
        s_add_u32 s{sPB}, s{sPB}, s3
        s_lshl_b32 s3, s{sFC}, 10
        s_add_u32 s{sPB}, s{sPB}, s3
        v_lshlrev_b32 v11, 4, v{vLANE}''')
        late = Side('late')
        for ps in range(8, 11):
            for tt in range(4): late.add(rd_frag(ps, tt))
        act = [mid, sl]
        class Lazy3(list):
            def __iter__(self2): return iter(list(act))
        def dma_p2_for_stage(st):
            sd = Side('dma')
            for t in range(38, 54):
                if P2ISSUE[t] == st: self.dma_p2(t, sd)
            return sd
        def xbar():
            drain(E, [mid, sl]); E.wait_lgkm(0); E.barrier()
            act[:] = [late]
        accs = lambda pn: HR if pn == 0 else (S0 if pn % 2 == 1 else S1)
        st_side = None
        REG1 = [S0 + 32 + 4*i for i in range(8)] + [S1 + 32 + 4*i for i in range(8)]
        REG2 = [XV + 4*i for i in range(8)] + [HR + 4*i for i in range(8)]
        rs = Side('rsetup')
        rs.add('v_mov_b32 v6, 0x00003f80', 'v_mov_b32 v7, 0x3f800000', f'v_lshlrev_b32 v8, 2, v{vT16}', 'v_mov_b32 v9, 0x40000000', 'v_mov_b32 v14, 0',
               f'v_mov_b32 v10, s{sNONCE}', f's_lshl_b32 s41, s{sFC}, 2', f's_add_u32 s41, s41, s{sFLG}')
        rs.add(f's_lshr_b32 s3, s{sFC}, 1', f's_lshl_b32 s3, s3, 4', f's_add_u32 s3, s3, s{sT0}', f'v_add_u32 v4, s3, v{vT16}',
               'v_mul_u32_u24 v4, 1152, v4', f's_and_b32 s3, s{sFC}, 1', f's_lshl_b32 s3, s3, 6', 'v_add_u32 v4, s3, v4',
               f's_lshl_b32 s3, s{sW}, 3', 'v_add_u32 v5, s3, v4', f'v_lshl_add_u32 v4, v{vG}, 3, v4',
               f's_mul_i32 s48, s{sTB}, {9*16*16384}', f's_lshl_b32 s3, s{sFC}, 14', 's_add_u32 s48, s48, s3')
        rs.group('v_cmp_eq_u32 vcc, 0, v0', 's_nop 1', 'v_cndmask_b32 v3, v9, v14, vcc')
        redA = Side('redA')
        hooks_for = {pn: {} for pn in range(9)}
        for p in range(7):
            q = p + 2
            u = 10 if not self.dbg.get('early') else 5
            if p == 6: u = 10
            hooks_for[q][('prebar', u)] = (lambda p=p: E.wait_vm_tag(('ps', p)))
            hooks_for[q][u] = (lambda p=p: self.flag_write(p))
        vF = 12
        def a_poll():
            E.emits(f'''s_lshl_b32 s40, s{sW}, 7
            s_add_u32 s40, s40, s{sFLG}''')
            self.poll_issue(vF, 40)
        def a_check():
            E.emits(f'''s_lshl_b32 s40, s{sW}, 7
            s_add_u32 s40, s40, s{sFLG}''')
            self.poll_check(vF, 40, 'A')
            E.emits(f'''s_mul_i32 s38, s{sW}, {16*16384}
            s_add_u32 s38, s38, s48
            s_lshl_b32 s3, s{sW}, 7
            v_add_u32 v13, s3, v4''')
            self.red_loads(REG1, 38, 11, redA)
            redA.add(f'buffer_load_dwordx2 {vr(252, 2)}, v13, {srd(SX)}, 0 offen', f'buffer_load_dwordx2 {vr(254, 2)}, v13, {srd(SX)}, 0 offen offset:32')
        hooks_for[8][4] = a_poll
        def a_check2():
            self.tstamp(10); a_check(); self.tstamp(11)
        sumA = Side('sumA')
        self.red_sum(REG1, 252, 236, 13, sumA)
        for pn in range(9):
            nxt = pu[pn + 1][0]['reads'] if pn < 8 else []
            if pn == 0:
                self.run_units(pu[0], nxt, Lazy3(), dma_p2_for_stage, {3: lambda: drain(E, [mid]), 7: xbar, 8: lambda: drain(E, [late])})
                drain(E, [late])
                self.stamp(7)
            else:
                sides = [st_side]
                if pn == 1: sides.append(rs)
                self.run_units(pu[pn], nxt, sides, dma_p2_for_stage, hooks_for[pn])
                drain(E, sides)
            self.pstamp(pn + 1)
            st_side = self.store_stream(pn, accs(pn))
        self.stamp(8)
        drain(E, [st_side])
        a_check2()
        drain(E, [redA])
        E.wait_vm_tag(('ps', 8))
        self.tstamp(1)
        E.barrier()
        self.tstamp(2)
        self.flag_write(7)
        self.flag_write(8)
        E.emits(f'''s_lshl_b32 s40, s{sW}, 7
        s_add_u32 s40, s40, s{sFLG}
        s_add_u32 s40, s40, {4*128}
        s_add_u32 s39, s{sFLG}, {8*128}''')
        self.poll_issue(14, 40)
        self.poll_issue(15, 39)
        drain(E, [sumA])
        self.tstamp(3)
        self.poll_check(14, 40, 'B')
        self.tstamp(4)
        E.emits(f'''s_mul_i32 s38, s{sW}, {16*16384}
        s_add_u32 s38, s38, s48
        s_add_u32 s38, s38, {4*16*16384}
        s_lshl_b32 s3, s{sW}, 7
        s_add_u32 s3, s3, {4*128}
        v_add_u32 v13, s3, v4''')
        self.red_loads(REG1, 38, 11)
        E.emits(f'''buffer_load_dwordx2 {vr(252, 2)}, v13, {srd(SX)}, 0 offen
        buffer_load_dwordx2 {vr(254, 2)}, v13, {srd(SX)}, 0 offen offset:32''')
        E.emits(f'''s_lshl_b32 s3, s{sW}, 8
        v_lshl_add_u32 v12, v{vT16}, 4, s3
        v_add_u32 v5, {8*128}, v5
        v_mov_b32 v9, 0x40000000
        v_cmp_gt_u32 vcc, 16, v{vLANE}
        s_add_u32 s38, s48, {8*16*16384}''')
        E.emit('v_cndmask_b32 v9, v9, v5, vcc')
        E.emits(f'''buffer_load_dwordx2 {vr(248, 2)}, v5, {srd(SX)}, 0 offen
        buffer_load_dwordx2 {vr(250, 2)}, v5, {srd(SX)}, 0 offen offset:32''')
        self.poll_check(15, 39, 'C')
        self.tstamp(5)
        self.red_loads(REG2, 38, 12)
        self.red_sum(REG1, 252, 236, 13)
        self.tstamp(6)
        self.red_sum(REG2, 248, 224, 9)
        E.emits(f'''s_lshl_b32 s3, s{sTB}, 7
        s_add_u32 s3, s3, {CTRL}
        s_cmp_eq_u32 s{sFC}, 0
        s_cselect_b32 s3, s3, 0x40000000
        buffer_store_dword v10, v3, {srd(SW)}, s3 offen sc1''')
        E.wait_vm(0)
        self.stamp(9)
        self.pstamp(10)
        self.stamp_store()


def reduce_kernel():
    E = Emitter()
    E.emits('''s_cmp_ge_u32 s2, 576
    s_cbranch_scc1 L_red_end
    s_load_dwordx2 s[4:5], s[0:1], 0
    s_load_dwordx2 s[6:7], s[0:1], 56
    s_load_dwordx2 s[36:37], s[0:1], 72
    v_lshrrev_b32 v4, 6, v0
    v_and_b32 v1, 63, v0
    v_and_b32 v2, 15, v0
    v_readfirstlane_b32 s20, v4
    v_bfe_u32 v3, v0, 4, 2''')
    E.raw('s_waitcnt lgkmcnt(0)'); E.ws += 1
    for (r, p, sz) in ((8, 4, 2359296), (12, 6, 2359296), (16, 36, 0x10000000)):
        E.emits(f'''s_mov_b32 s{r}, s{p}
        s_mov_b32 s{r+1}, s{p+1}
        s_mov_b32 s{r+2}, {sz}
        s_mov_b32 s{r+3}, 0x20000''')
    E.emits('''s_lshl_b32 s21, s2, 2
    s_add_u32 s21, s21, s20
    s_lshl_b32 s22, s21, 14
    v_lshlrev_b32 v5, 4, v1''')
    for f in range(16):
        E.emit(f's_add_u32 s23, s22, {(f//4)*4096}')
        E.emit(f'buffer_load_dwordx4 v[{16+4*f}:{19+4*f}], v5, s[16:19], s23 offen offset:{(f%4)*1024}')
    E.emits('''s_mul_hi_u32 s24, s21, 0x1c71c72
    s_mul_i32 s25, s24, 144
    s_sub_u32 s25, s21, s25
    s_lshr_b32 s26, s25, 4
    s_and_b32 s27, s25, 15
    s_lshr_b32 s28, s27, 1
    s_and_b32 s29, s27, 1
    s_lshl_b32 s30, s24, 7
    s_lshl_b32 s31, s28, 4
    s_add_u32 s30, s30, s31
    v_add_u32 v6, s30, v2
    s_movk_i32 s31, 1152
    v_mul_lo_u32 v6, v6, s31
    s_lshl_b32 s32, s26, 7
    s_lshl_b32 s33, s29, 6
    s_add_u32 s32, s32, s33
    v_lshl_add_u32 v6, v3, 3, v6
    v_add_u32 v6, s32, v6
    buffer_load_dwordx2 v[8:9], v6, s[8:11], 0 offen
    buffer_load_dwordx2 v[10:11], v6, s[8:11], 0 offen offset:32
    s_mov_b32 s34, 0xffff0000''')
    A = 80
    for d in range(4):
        E.emit(f'v_lshlrev_b32 v{A+2*d}, 16, v{8+d}')
        E.emit(f'v_and_b32 v{A+2*d+1}, s34, v{8+d}')
    for f in range(16):
        for d in range(4):
            x = 16 + 4 * f + d
            E.emit(f'v_lshlrev_b32 v{90+2*d}, 16, v{x}')
            E.emit(f'v_and_b32 v{91+2*d}, s34, v{x}')
        for d in range(4):
            E.emit(f'v_pk_add_f32 v[{A+2*d}:{A+2*d+1}], v[{A+2*d}:{A+2*d+1}], v[{90+2*d}:{91+2*d}]')
    for d in range(4):
        E.emit(f'v_cvt_pk_bf16_f32 v{8+d}, v{A+2*d}, v{A+2*d+1}')
    E.emits('''buffer_store_dwordx2 v[8:9], v6, s[12:15], 0 offen
    buffer_store_dwordx2 v[10:11], v6, s[12:15], 0 offen offset:32''')
    E.wait_vm(0)
    E.label('L_red_end')
    E.raw('s_endpgm')
    return E


KN = 'parallel_sum__sliding_local_dilated__swiglu_ffn__prompt_kernel'
HEADER = '''; Fused LayerNorm + sliding dilated attention + SwiGLU FFN for gfx950 (generated by own script)
; @launch grid=(256,1,1) block=(256,1,1) lds=163840
.amdgcn_target "amdgcn-amd-amdhsa--gfx950"
.text
'''


def kdesc(name, vgpr, accum, sgpr=102):
    return f'''.amdhsa_kernel {name}
  .amdhsa_next_free_vgpr {vgpr}
  .amdhsa_next_free_sgpr {sgpr}
  .amdhsa_accum_offset {accum}
  .amdhsa_group_segment_fixed_size 0
  .amdhsa_kernarg_size 80
  .amdhsa_user_sgpr_count 2
  .amdhsa_user_sgpr_kernarg_segment_ptr 1
  .amdhsa_system_sgpr_workgroup_id_x 1
.end_amdhsa_kernel
'''


def build(dbg=None):
    g = Gen(dbg)
    g.main_kernel()
    s = HEADER
    s += f'.globl {KN}\n.p2align 8\n.type {KN},@function\n{KN}:\n' + g.E.text()
    s += '.section .rodata,"a"\n.p2align 6\n' + kdesc(KN, 512, 256)
    sys.stderr.write(f'main: {g.E.n} instrs, nops {g.E.nops}, est time {g.E.time}, {g.E.stats}\n')
    return s


if __name__ == '__main__':
    out = sys.argv[1] if len(sys.argv) > 1 else 'k.s'
    dbg = {a: True for a in sys.argv[2:]}
    open(out, 'w').write(build(dbg))
```
